```python
import torch

def _softmax(x, axis=-1):
    return torch.softmax(x, dim=axis)
def _gelu(x):
    return torch.nn.functional.gelu(x, approximate="tanh")
def _silu(x):
    return torch.nn.functional.silu(x)
def _sigmoid(x):
    return torch.sigmoid(x)
def _layernorm(x, axis=-1, eps=1e-5):
    m = x.mean(dim=axis, keepdim=True)
    v = x.var(dim=axis, keepdim=True, unbiased=False)
    return (x - m) / torch.sqrt(v + eps)
def _scatter_add(tgt, idx, src, axis=0):
    return tgt.clone().index_add_(axis, idx, src)
def _segment_sum(src, seg, n):
    out = torch.zeros((n,) + src.shape[1:], dtype=src.dtype)
    return out.index_add_(0, seg, src)
def _pad(x, pw):
    flat = tuple(v for pair in reversed(pw) for v in pair)
    return torch.nn.functional.pad(x, flat)

kernel_name = 'gated_mix__linear_attn_block__dense_activation_mish__prompt'

def setup_inputs():

    _w = (lambda a: (lambda t: t.to(torch.bfloat16) if t.is_floating_point() else t)(torch.as_tensor(a)))
    def _A_setup():
        B, S, D = 1, 2048, 448
        return {
            "x": _w((lambda *s: torch.randn(*s, dtype=torch.bfloat16) * 0.05)(B, S, D)),
            "wqkv": _w((lambda *s: torch.randn(*s, dtype=torch.bfloat16) * 0.8)(D, 3 * D)),
            "wo": _w((lambda *s: torch.randn(*s, dtype=torch.bfloat16) * 0.1)(D, D)),
        }
    _A_in = _A_setup()

    def _B_setup():
        B, S, D, F = 1, 2048, 448, 1792
        return {
            "x": _w((lambda *s: torch.randn(*s, dtype=torch.bfloat16) * 0.05)(B, S, D)),
            "w1": _w((lambda *s: torch.randn(*s, dtype=torch.bfloat16) * 12.8)(D, F) * (D ** -0.5)),
            "b1": _w((lambda *s: torch.randn(*s, dtype=torch.bfloat16) * 0.2)(F)),
            "w2": _w((lambda *s: torch.randn(*s, dtype=torch.bfloat16) * 0.05)(F, D) * (F ** -0.5)),
        }
    _B_in = _B_setup()

    return {
        "A_x": _A_in["x"],
        "A_wqkv": _A_in["wqkv"],
        "A_wo": _A_in["wo"],
        "B_x": _B_in["x"],
        "B_w1": _B_in["w1"],
        "B_b1": _B_in["b1"],
        "B_w2": _B_in["w2"],
        "gate_w": _w((lambda *s: torch.randn(*s, dtype=torch.bfloat16) * 0.05)(448) * 16.0),
    }

def reference(A_x, A_wqkv, A_wo, B_x, B_w1, B_b1, B_w2, gate_w):
    def _A_ref(x, wqkv, wo):
        B, S, D = x.shape
        H = 16; Dh = D // H
        qkv = (lambda x, *d: x.permute(*d))((x @ wqkv).reshape(B, S, 3, H, Dh), 2, 0, 3, 1, 4)
        q, k, v = qkv[0], qkv[1], qkv[2]
        phi = lambda t: torch.where(t > 0, t + 1, torch.exp(t)) + 1e-6
        pq, pk = phi(q), phi(k)
        kv = torch.einsum("bhsd,bhse->bhde", pk, v)
        z = torch.einsum("bhsd->bhd", pk)
        num = torch.einsum("bhqd,bhde->bhqe", pq, kv)
        den = torch.einsum("bhqd,bhd->bhq", pq, z)[..., None] + 1e-6
        o = num / den
        return (lambda x, *d: x.permute(*d))(o, 0, 2, 1, 3).reshape(B, S, D) @ wo

    def _B_ref(x, w1, b1, w2):
        h = torch.einsum("bsd,df->bsf", x, w1) + b1
        sp = torch.log1p(torch.exp(-torch.abs(h))) + torch.where(h > 0, h, torch.zeros_like(h))
        act = h * torch.tanh(sp)
        return torch.einsum("bsf,fd->bsd", act, w2)

    x = A_x
    g = _sigmoid((x * gate_w).sum(-1, keepdims=True))
    a = _A_ref(x, A_wqkv, A_wo)
    b = _B_ref(x, B_w1, B_b1, B_w2)
    return g * a + (1 - g) * b
```

```python
import sys
NAME = "gated_mix__linear_attn_block__dense_activation_mish__prompt"

class Cfg:
    stamps = False
    spin_limit = 1 << 20
cfg = Cfg()

WS_ACT = 0
TG_STRIDE = 144 * 1024
WS_KV = 0x1000000
WS_G = WS_KV + 0x10000
WS_FH = WS_G + 0x2000
WS_FR = WS_FH + 0x400
WS_BYTES = 0x1100000
WS_STAMP = 0x8000000

RA = 0
XB = 57344
MISC = XB
SB = XB
RB = 106496
W2RING = 65536
KVSCR = 65536
LDS_BYTES = 163840

sX, sWQKV, sWO, sW1, sB1, sW2, sGATE, sOUT, sDBG, sWS = 4, 6, 8, 12, 14, 16, 18, 20, 22, 24
SRD_X, SRD_W, SRD_W2, SRD_WO, SRD_WS, SRD_OUT = 28, 32, 36, 40, 44, 48
sWave, sRB, sJ, sRot, sTB, sCB, sRole, sTG = 52, 53, 54, 55, 56, 57, 58, 59
sNonce = 60
sT0, sT1, sT2, sT3, sT4, sT5 = 62, 63, 64, 65, 66, 67
sXbase, sWbase, sWstep, sKc = 68, 69, 70, 71
sLog2e, sEps = 72, 73
sActBase = 74
sMask = 76
sSlot = 78
sCnt = 79
sRotA = 80
sAslot, sWslot, sN = 81, 82, 83
sSbase = 84
sStage = 85
sP2, sHalf = 86, 87
sTile0 = 88
sExec = 90
sRB2 = 92
sStamp = 94
sW8 = 96
vTid, vLane, vXd0, vXd1, vWd, vSd = 0, 1, 2, 3, 4, 5
vXr = 6
vTrA, vTrB, vTrS, vL16 = 10, 11, 12, 13
vBias = 14
vFl = 18
vNon = 20
vBT = 24
vOne = 28
ACC0, ACC1 = 32, 48
WF = 64
TMP = 80
PK = 112
PV = 120
vGate = 19
vVpad = 22
vW2d = 14
NVG = 128
NAG = 112

class Gen:
    def __init__(self):
        self.L = []
        self.q = []
        self.nlab = 0
        self.stampn = 0
    def e(self, s):
        self.L.append("  " + s)
    def lab(self, s):
        self.L.append(s + ":")
    def newlab(self, p="L"):
        self.nlab += 1
        return "%s_%d" % (p, self.nlab)
    def c(self, s):
        self.L.append("  ; " + s)
    def vm(self, s, tag):
        self.e(s); self.q.append(tag)
    def wait(self, tags, lgkm=None):
        if isinstance(tags, str): tags = [tags]
        last = -1
        for i, t in enumerate(self.q):
            if t in tags: last = i
        n = len(self.q) - 1 - last
        assert last >= 0, ("tag not in queue", tags, self.q)
        assert n <= 63
        self.e("s_waitcnt vmcnt(%d)%s" % (n, "" if lgkm is None else " lgkmcnt(%d)" % lgkm))
        self.q = self.q[last + 1:]
    def wait_all(self):
        self.e("s_waitcnt vmcnt(0)"); self.q = []
    def stamp(self, idx):
        if not cfg.stamps: return
        self.e("s_memtime s[%d:%d]" % (sStamp, sStamp + 1))
        self.e("s_waitcnt lgkmcnt(0)")
        self.e("v_writelane_b32 v126, s%d, %d" % (sStamp, idx)) if False else None
        self.e("v_mov_b32 v%d, s%d" % (TMP + 30, sStamp))
        self.e("v_accvgpr_write_b32 a%d, v%d" % (112 + idx, TMP + 30))

g = Gen()
e = g.e

def dma(srd, voff, soff, m0expr, tag, imm=0, sc="", setm0=True):
    if setm0:
        e(m0expr)
        e("s_nop 0")
    g.vm("buffer_load_dwordx4 v%d, s[%d:%d], %s offen%s%s lds" % (voff, srd, srd + 3, soff, (" offset:%d" % imm) if imm else "", (" " + sc) if sc else ""), tag)

def rot_chunk(dst, u):
    e("s_add_u32 s%d, s%d, %d" % (dst, sRot, u))
    e("s_cmp_ge_u32 s%d, 7" % dst)
    e("s_cselect_b32 s%d, 7, 0" % sT5)
    e("s_sub_u32 s%d, s%d, s%d" % (dst, dst, sT5))

def issue_x(u):
    rot_chunk(sKc, u)
    e("s_lshl_b32 s%d, s%d, 7" % (sT0, sKc))
    e("s_add_u32 s%d, s%d, s%d" % (sT0, sT0, sXbase))
    e("s_lshl_b32 s%d, s%d, 11" % (sT1, sWave))
    dma(SRD_X, vXd0, "s%d" % sT0, "s_add_u32 m0, s%d, %d" % (sT1, XB + (u % 3) * 16384), "x%d" % u)
    dma(SRD_X, vXd1, "s%d" % sT0, None, "x%d" % u, imm=1024, setm0=False)

def issue_w(u, region, colbytes, tag):
    rot_chunk(sKc, u)
    e("s_mul_i32 s%d, s%d, s%d" % (sT0, sKc, sWstep))
    e("s_add_u32 s%d, s%d, s%d" % (sT0, sT0, sWbase))
    if colbytes:
        e("s_add_u32 s%d, s%d, %d" % (sT0, sT0, colbytes))
    e("s_lshl_b32 s%d, s%d, 10" % (sT1, sWave))
    dma(SRD_W, vWd, "s%d" % sT0, "s_add_u32 m0, s%d, %d" % (sT1, region + u * 8192), tag)

def issue_s():
    e("s_mov_b32 exec_hi, 0")
    for u in range(7):
        rot_chunk(sKc, u)
        e("s_mul_i32 s%d, s%d, s%d" % (sT0, sKc, sWstep))
        e("s_add_u32 s%d, s%d, s%d" % (sT0, sT0, sSbase))
        e("s_lshl_b32 s%d, s%d, 9" % (sT1, sWave))
        dma(SRD_W, vSd, "s%d" % sT0, "s_add_u32 m0, s%d, %d" % (sT1, SB + u * 4096), "S")
    e("s_mov_b64 exec, -1")

def mfma(acc, wf, xf, tokcol, first_c=None):
    c = first_c if first_c is not None else "v[%d:%d]" % (acc, acc + 15)
    W = "v[%d:%d]" % (wf, wf + 3); X = "a[%d:%d]" % (xf, xf + 3)
    if tokcol:
        e("v_mfma_f32_32x32x16_bf16 v[%d:%d], %s, %s, %s" % (acc, acc + 15, X, W, c))
    else:
        e("v_mfma_f32_32x32x16_bf16 v[%d:%d], %s, %s, %s" % (acc, acc + 15, W, X, c))

def bias_mfma(acc, bi):
    e("v_mov_b32 v%d, v%d" % (vBT, vBias + bi))
    e("s_nop 1")
    e("v_mfma_f32_32x32x16_bf16 v[%d:%d], v[%d:%d], v[%d:%d], 0" % (acc, acc + 15, vBT, vBT + 3, vOne, vOne + 3))

def tile_body(acc, vtr, rowbytes, tokcol, bias=None, depth=3):
    def rd(s):
        w = WF + 4 * (s % 4)
        e("ds_read_b64_tr_b16 v[%d:%d], v%d offset:%d" % (w, w + 1, vtr, (16 * s) * rowbytes))
        e("ds_read_b64_tr_b16 v[%d:%d], v%d offset:%d" % (w + 2, w + 3, vtr, (16 * s + 4) * rowbytes))
    for s in range(depth): rd(s)
    if bias is not None:
        bias_mfma(acc, bias)
    for s in range(28):
        rem = min(27, s + depth - 1) - s
        e("s_waitcnt lgkmcnt(%d)" % (2 * rem))
        mfma(acc, WF + 4 * (s % 4), 4 * s, tokcol, first_c=("0" if (s == 0 and bias is None) else None))
        if s + depth < 28: rd(s + depth)

def mfma_fence():
    e("s_nop 7"); e("s_nop 4")

def epi_mish(acc, kstep_off, tag):
    T = TMP
    G = 8
    for b in range(0, 16, G):
        r = range(b, b + G)
        for i in r: e("v_mul_f32 v%d, s%d, v%d" % (T + i - b, sLog2e, acc + i))
        for i in r: e("v_exp_f32 v%d, v%d" % (T + i - b, T + i - b))
        for i in r: e("v_fma_f32 v%d, v%d, 0.5, 1.0" % (T + 8 + i - b, T + i - b))
        for i in r: e("v_fma_f32 v%d, v%d, v%d, 1.0" % (T + i - b, T + i - b, T + 8 + i - b))
        for i in r: e("v_rcp_f32 v%d, v%d" % (T + i - b, T + i - b))
        for i in r: e("v_fma_f32 v%d, -v%d, v%d, v%d" % (T + i - b, acc + i, T + i - b, acc + i))
        for i in range(0, G, 2):
            e("v_cvt_pk_bf16_f32 v%d, v%d, v%d" % (PK + (b + i) // 2, T + i, T + i + 1))
        e("s_add_u32 s%d, %s, %d" % (sT0, kstep_off[0], kstep_off[1] + (b // 8) * 1024))
        g.vm("buffer_store_dwordx4 v[%d:%d], v%d, s[%d:%d], s%d offen sc0 sc1" % (PK + b // 2, PK + b // 2 + 3, vL16, SRD_WS, SRD_WS + 3, sT0), tag)

def epi_phi(acc, dst):
    T = TMP
    for b in range(0, 16, 8):
        r = range(b, b + 8)
        for i in r: e("v_mul_f32 v%d, s%d, v%d" % (T + i - b, sLog2e, acc + i))
        for i in r: e("v_exp_f32_e64 v%d, v%d clamp" % (T + i - b, T + i - b))
        for i in r: e("v_max_f32 v%d, 0, v%d" % (T + 8 + i - b, acc + i))
        for i in r: e("v_add_f32 v%d, v%d, v%d" % (T + i - b, T + i - b, T + 8 + i - b))
        for i in r: e("v_add_f32 v%d, s%d, v%d" % (T + i - b, sEps, T + i - b))
        for i in range(0, 8, 2):
            e("v_cvt_pk_bf16_f32 v%d, v%d, v%d" % (dst + (b + i) // 2, T + i, T + i + 1))

def barrier():
    e("s_barrier")

def write_flag(offs_sreg_expr_lines, stage, tag):
    for l in offs_sreg_expr_lines: e(l)
    e("s_or_b32 s%d, s%d, %d" % (sT1, sNonce, stage))
    e("v_mov_b32 v%d, s%d" % (TMP + 28, sT1))
    e("v_mov_b32 v%d, s%d" % (TMP + 29, sNonce + 1))
    e("v_mov_b32 v%d, 0" % (TMP + 27))
    e("s_mov_b64 exec, 1")
    g.vm("buffer_store_dwordx2 v[%d:%d], v%d, s[%d:%d], s%d offen sc0 sc1" % (TMP + 28, TMP + 29, TMP + 27, SRD_WS, SRD_WS + 3, sT0), tag)
    e("s_mov_b64 exec, -1")

def poll_issue(soff):
    g.vm("buffer_load_dwordx2 v[%d:%d], v%d, s[%d:%d], s%d offen sc1" % (TMP + 24, TMP + 25, vFl, SRD_WS, SRD_WS + 3, soff), "poll")

def poll_check(soff, stage, mask, first_wait=True):
    again = g.newlab("L_poll"); ok = g.newlab("L_pok"); chk = g.newlab("L_pchk")
    e("s_mov_b32 s%d, %d" % (sCnt, cfg.spin_limit))
    if mask is not None:
        e("s_mov_b32 s%d, %d" % (sMask, mask))
    if first_wait:
        g.wait("poll")
    else:
        e("s_waitcnt vmcnt(0)")
    e("s_branch %s" % chk)
    g.lab(again)
    e("s_sleep 1")
    e("buffer_load_dwordx2 v[%d:%d], v%d, s[%d:%d], s%d offen sc1" % (TMP + 24, TMP + 25, vFl, SRD_WS, SRD_WS + 3, soff))
    e("s_waitcnt vmcnt(0)")
    g.lab(chk)
    e("v_xor_b32 v%d, s%d, v%d" % (TMP + 24, sNonce, TMP + 24))
    e("v_xor_b32 v%d, s%d, v%d" % (TMP + 25, sNonce + 1, TMP + 25))
    st = str(stage) if isinstance(stage, int) else stage
    e("v_cmp_le_u32 vcc, %s, v%d" % (st, TMP + 24))
    e("v_cmp_ge_u32 s[%d:%d], 3, v%d" % (sT2, sT3, TMP + 24))
    e("s_and_b32 vcc_lo, vcc_lo, s%d" % sT2)
    e("v_cmp_eq_u32 s[%d:%d], 0, v%d" % (sT2, sT3, TMP + 25))
    e("s_and_b32 vcc_lo, vcc_lo, s%d" % sT2)
    e("s_and_b32 s%d, vcc_lo, s%d" % (sT2, sMask))
    e("s_cmp_eq_u32 s%d, s%d" % (sT2, sMask))
    e("s_cbranch_scc1 %s" % ok)
    e("s_sub_u32 s%d, s%d, 1" % (sCnt, sCnt))
    e("s_cmp_lg_u32 s%d, 0" % sCnt)
    e("s_cbranch_scc1 %s" % again)
    g.lab(ok)

def nonce_issue():
    e("v_mov_b32 v%d, 0" % (TMP + 26))
    g.vm("global_load_dwordx2 v[%d:%d], v%d, s[%d:%d] sc1" % (vNon, vNon + 1, TMP + 26, sDBG, sDBG + 1), "nonce")

def nonce_get():
    again = g.newlab("L_non"); ok = g.newlab("L_nok"); chk = g.newlab("L_nchk")
    e("s_mov_b32 s%d, %d" % (sCnt, cfg.spin_limit))
    e("s_branch %s" % chk)
    g.lab(again)
    e("s_sleep 1")
    e("v_mov_b32 v%d, 0" % (TMP + 26))
    e("global_load_dwordx2 v[%d:%d], v%d, s[%d:%d] sc1" % (vNon, vNon + 1, TMP + 26, sDBG, sDBG + 1))
    e("s_waitcnt vmcnt(0)")
    g.lab(chk)
    e("v_readfirstlane_b32 s%d, v%d" % (sNonce, vNon))
    e("v_readfirstlane_b32 s%d, v%d" % (sNonce + 1, vNon + 1))
    e("s_nop 3")
    e("s_cmp_lg_u32 s%d, 0" % (sNonce + 1))
    e("s_cbranch_scc1 %s" % ok)
    e("s_sub_u32 s%d, s%d, 1" % (sCnt, sCnt))
    e("s_cmp_lg_u32 s%d, 0" % sCnt)
    e("s_cbranch_scc1 %s" % again)
    g.lab(ok)

def p2_chunk_id(n):
    if n < 4:
        base, cnt, kind = 0, 8, 0
    elif n < 8:
        base, cnt, kind = 4, 8, 1
    else:
        base, cnt, kind = 8, 12, 2
    e("s_add_u32 s%d, s%d, %d" % (sT2, sP2, 2 * (n - base)))
    if cnt == 8:
        e("s_and_b32 s%d, s%d, 7" % (sT2, sT2))
        e("s_lshr_b32 s%d, s%d, 1" % (sT3, sT2))
        e("s_and_b32 s%d, s%d, 1" % (sT2, sT2))
        e("s_lshl_b32 s%d, s%d, 2" % (sT2, sT2))
        e("s_mul_i32 s%d, s%d, 7" % (sT3, sT3))
        e("s_add_u32 s%d, s%d, s%d" % (sT2, sT2, sT3))
        if kind: e("s_add_u32 s%d, s%d, 1" % (sT2, sT2))
    else:
        for _ in range(2):
            e("s_cmp_ge_u32 s%d, 12" % sT2)
            e("s_cselect_b32 s%d, 12, 0" % sT3)
            e("s_sub_u32 s%d, s%d, s%d" % (sT2, sT2, sT3))
        e("s_mul_i32 s%d, s%d, 43" % (sT3, sT2))
        e("s_lshr_b32 s%d, s%d, 7" % (sT3, sT3))
        e("s_mul_i32 s%d, s%d, 3" % (sT4, sT3))
        e("s_sub_u32 s%d, s%d, s%d" % (sT2, sT2, sT4))
        e("s_cmp_eq_u32 s%d, 2" % sT2)
        e("s_cselect_b32 s%d, 4, s%d" % (sT2, sT2))
        e("s_mul_i32 s%d, s%d, 7" % (sT3, sT3))
        e("s_add_u32 s%d, s%d, s%d" % (sT2, sT2, sT3))
        e("s_add_u32 s%d, s%d, 2" % (sT2, sT2))

def p2_issue_A(n):
    if n < 14:
        p2_chunk_id(n)
        e("s_lshl_b32 s%d, s%d, 12" % (sT0, sT2))
        e("s_add_u32 s%d, s%d, %d" % (sT0, sT0, 32 * 1024))
    else:
        e("s_add_u32 s%d, s%d, %d" % (sT2, sP2, 2 * (n - 14)))
        e("s_and_b32 s%d, s%d, 7" % (sT2, sT2))
        e("s_lshl_b32 s%d, s%d, 12" % (sT0, sT2))
    e("s_add_u32 s%d, s%d, s%d" % (sT0, sT0, sActBase))
    e("s_lshl_b32 s%d, s%d, 12" % (sT1, sW8))
    for i in range(4):
        dma(SRD_WS, vL16, "s%d" % sT0, "s_add_u32 m0, s%d, %d" % (sT1, (n % 3) * 16384), "A%d" % n, imm=i * 1024, sc="sc1", setm0=(i == 0))

def p2_issue_W(n):
    slot = (2 + n) % 6
    if n < 14:
        p2_chunk_id(n)
        e("s_mul_i32 s%d, s%d, %d" % (sT0, sT2, 64 * 896))
        e("s_add_u32 s%d, s%d, s%d" % (sT0, sT0, sWbase))
        srd = SRD_W2
    else:
        e("s_add_u32 s%d, s%d, %d" % (sT2, sP2, 2 * (n - 14)))
        e("s_and_b32 s%d, s%d, 7" % (sT2, sT2))
        e("s_mul_i32 s%d, s%d, %d" % (sT0, sT2, 56 * 896))
        e("s_add_u32 s%d, s%d, s%d" % (sT0, sT0, sSbase))
        srd = SRD_WO
    e("s_lshl_b32 s%d, s%d, 12" % (sT1, sW8))
    for i in range(4):
        dma(srd, vW2d + i, "s%d" % sT0, "s_add_u32 m0, s%d, %d" % (sT1, W2RING + slot * 16384), "W%d" % n, imm=i * 1024, setm0=(i == 0))

def p2_producer_setup():
    e("s_sub_u32 s%d, s%d, 4" % (sW8, sWave))
    e("s_lshr_b32 s%d, s%d, 1" % (sHalf, sW8))
    e("s_and_b32 s%d, s%d, 1" % (sT0, sW8))
    e("s_lshl_b32 s%d, s%d, 1" % (sP2, sRotA))
    e("s_add_u32 s%d, s%d, s%d" % (sP2, sP2, sHalf))
    e("s_lshl_b32 s%d, s%d, 7" % (sT1, sCB))
    e("s_mul_i32 s%d, s%d, %d" % (sT2, sT0, 32 * 896))
    e("s_add_u32 s%d, s%d, s%d" % (sWbase, sT1, sT2))
    e("s_mul_i32 s%d, s%d, %d" % (sT2, sT0, 28 * 896))
    e("s_add_u32 s%d, s%d, s%d" % (sSbase, sT1, sT2))
    e("v_lshrrev_b32 v%d, 3, v%d" % (TMP, vLane))
    e("v_mul_u32_u24 v%d, 896, v%d" % (TMP, TMP))
    e("v_bfe_u32 v%d, v%d, 4, 1" % (TMP + 1, vLane))
    e("v_lshlrev_b32 v%d, 2, v%d" % (TMP + 1, TMP + 1))
    e("v_and_b32 v%d, 7, v%d" % (TMP + 2, vLane))
    e("v_xor_b32 v%d, v%d, v%d" % (TMP + 1, TMP + 1, TMP + 2))
    e("v_lshl_add_u32 v%d, v%d, 4, v%d" % (vW2d, TMP + 1, TMP))
    for i in range(1, 4):
        e("v_add_u32 v%d, %d, v%d" % (vW2d + i, i * (8 * 896 - 1024), vW2d))

def p2_act_base_producer():
    e("s_and_b32 s%d, s%d, 1" % (sT0, sW8))
    e("s_lshl_b32 s%d, s%d, 1" % (sT1, sTB))
    e("s_add_u32 s%d, s%d, s%d" % (sT0, sT0, sT1))
    e("s_mul_i32 s%d, s%d, %d" % (sActBase, sT0, TG_STRIDE))

def fr_off(dst, rbreg):
    e("s_lshl_b32 s%d, s%d, 7" % (dst, rbreg))
    e("s_add_u32 s%d, s%d, %d" % (dst, dst, WS_FR))

def own_fr_lines():
    return ["s_lshl_b32 s%d, s%d, 7" % (sT0, sRB),
            "s_lshl_b32 s%d, s%d, 3" % (sT1, sRole),
            "s_add_u32 s%d, s%d, s%d" % (sT0, sT0, sT1),
            "s_add_u32 s%d, s%d, %d" % (sT0, sT0, WS_FR)]
def own_fh_lines():
    return ["s_lshl_b32 s%d, s%d, 7" % (sT0, sJ),
            "s_lshl_b32 s%d, s%d, 3" % (sT1, sRB),
            "s_add_u32 s%d, s%d, s%d" % (sT0, sT0, sT1),
            "s_add_u32 s%d, s%d, %d" % (sT0, sT0, WS_FH)]

def only_wave(w, fn):
    skip = g.newlab("L_skip")
    e("s_cmp_lg_u32 s%d, %d" % (sWave, w))
    e("s_cbranch_scc1 %s" % skip)
    saved = list(g.q)
    fn()
    g.q = saved if len(g.q) >= len(saved) else g.q
    g.lab(skip)

def prologue(att):
    rbcol = 896 if att else 128
    for u in range(3):
        issue_x(u); issue_w(u, RA, 0, "w%d" % u)
    issue_w(3, RA, 0, "w3")
    issue_w(0, RB, rbcol, "rb")
    if not att:
        bias_mfma_pending = True
    for u in range(7):
        if u == 0 and not att:
            g.wait(["x0", "w0", "bias"])
        else:
            g.wait(["x%d" % u, "w%d" % u])
        if u == 4:
            nonce_get()
            if att:
                only_wave(1, lambda: (g.wait("zero") if "zero" in g.q else None, write_flag(own_fh_lines(), 1, "flag")))
        barrier()
        g.stamp(1) if u == 0 else None
        if u >= 1 and u + 2 <= 6: issue_x(u + 2)
        if u + 4 <= 6: issue_w(u + 4, RA, 0, "w%d" % (u + 4))
        if u + 1 <= 6: issue_w(u + 1, RB, rbcol, "rb")
        if u == 1: nonce_issue()
        for s in range(4):
            e("ds_read_b128 a[%d:%d], v%d offset:%d" % (16 * u + 4 * s, 16 * u + 4 * s + 3, vXr + s, (u % 3) * 16384))
        for s in range(4):
            w = WF + 4 * s
            e("ds_read_b64_tr_b16 v[%d:%d], v%d offset:%d" % (w, w + 1, vTrA, (64 * u + 16 * s) * 128))
            e("ds_read_b64_tr_b16 v[%d:%d], v%d offset:%d" % (w + 2, w + 3, vTrA, (64 * u + 16 * s + 4) * 128))
        if u == 0 and not att:
            bias_mfma(ACC0, 0)
        for s in range(4):
            e("s_waitcnt lgkmcnt(%d)" % (6 - 2 * s))
            mfma(ACC0, WF + 4 * s, 16 * u + 4 * s, att, first_c=("0" if (att and u == 0 and s == 0) else None))
    g.wait("rb")
    barrier()
    g.stamp(2)

def build():
    K = NAME + "_kernel"
    e("s_cmp_ge_u32 s2, 256")
    e("s_cbranch_scc1 L_end")
    e("s_load_dwordx16 s[4:19], s[0:1], 0")
    e("s_load_dwordx4 s[20:23], s[0:1], 64")
    e("s_load_dwordx2 s[24:25], s[0:1], 80")
    if cfg.stamps:
        e("s_memrealtime s[98:99]")
        g.stamp(0)
    e("s_memrealtime s[%d:%d]" % (sNonce, sNonce + 1))
    e("v_lshrrev_b32 v%d, 6, v0" % TMP)
    e("v_and_b32 v%d, 63, v0" % vLane)
    e("v_readfirstlane_b32 s%d, v%d" % (sWave, TMP))
    e("s_and_b32 s%d, s2, 7" % sT0)
    e("s_lshr_b32 s%d, s2, 3" % sSlot)
    e("s_and_b32 s%d, s%d, 1" % (sT1, sT0))
    e("s_lshl_b32 s%d, s%d, 3" % (sT1, sT1))
    e("s_and_b32 s%d, s%d, 7" % (sT2, sSlot))
    e("s_add_u32 s%d, s%d, s%d" % (sRB, sT1, sT2))
    e("s_lshr_b32 s%d, s%d, 3" % (sT3, sSlot))
    e("s_and_b32 s%d, s%d, 6" % (sT1, sT0))
    e("s_and_b32 s%d, s%d, 1" % (sT4, sT3))
    e("s_cmp_eq_u32 s%d, 6" % sT1)
    e("s_cselect_b32 s%d, 1, 0" % sT5)
    e("s_cmp_ge_u32 s%d, 2" % sT3)
    e("s_cselect_b32 s%d, s%d, 0" % (sT5, sT5))
    e("s_xor_b32 s%d, s%d, s%d" % (sT4, sT4, sT5))
    e("s_add_u32 s%d, s%d, s%d" % (sJ, sT1, sT4))
    e("s_cmp_ge_u32 s%d, 2" % sT3)
    e("s_cselect_b32 s%d, 0, 8" % sT5)
    e("s_add_u32 s%d, s%d, s%d" % (sRole, sJ, sT5))
    e("s_lshl_b32 s%d, s%d, 1" % (sT4, sT3))
    e("s_add_u32 s%d, s%d, s%d" % (sRot, sT2, sT4))
    e("s_cmp_ge_u32 s%d, 7" % sRot)
    e("s_cselect_b32 s%d, 7, 0" % sT5)
    e("s_sub_u32 s%d, s%d, s%d" % (sRot, sRot, sT5))
    e("s_mul_i32 s%d, s%d, 37" % (sT4, sSlot))
    e("s_lshr_b32 s%d, s%d, 8" % (sT4, sT4))
    e("s_mul_i32 s%d, s%d, 7" % (sT5, sT4))
    e("s_sub_u32 s%d, s%d, s%d" % (sCB, sSlot, sT5))
    e("s_lshl_b32 s%d, s%d, 2" % (sTB, sT0))
    e("s_add_u32 s%d, s%d, s%d" % (sTB, sTB, sT4))
    e("s_lshr_b32 s%d, s%d, 1" % (sRB2, sTB))
    e("s_add_u32 s%d, s%d, s%d" % (sRotA, sCB, sT4))
    e("s_and_b32 s%d, s%d, 3" % (sTG, sWave))
    e("s_mov_b32 s%d, 0x3fb8aa3b" % sLog2e)
    e("s_mov_b32 s%d, 0x358637bd" % sEps)
    T = TMP
    e("v_lshrrev_b32 v%d, 3, v%d" % (T, vLane))
    e("v_and_b32 v%d, 7, v%d" % (T + 1, vLane))
    e("v_lshrrev_b32 v%d, 4, v%d" % (T + 2, vLane))
    e("v_lshlrev_b32 v%d, 4, v%d" % (vL16, vLane))
    e("v_mul_u32_u24 v%d, 896, v%d" % (T + 3, T))
    e("v_xor_b32 v%d, v%d, v%d" % (T + 4, T + 1, T + 2))
    e("v_lshl_add_u32 v%d, v%d, 4, v%d" % (vXd0, T + 4, T + 3))
    e("v_xor_b32 v%d, 4, v%d" % (T + 4, T + 4))
    e("v_lshl_add_u32 v%d, v%d, 4, v%d" % (vXd1, T + 4, T + 3))
    e("v_add_u32 v%d, %d, v%d" % (vXd1, 8 * 896 - 1024, vXd1))
    e("v_and_b32 v%d, 1, v%d" % (T + 5, T + 2))
    e("v_lshlrev_b32 v%d, 2, v%d" % (T + 5, T + 5))
    e("v_xor_b32 v%d, v%d, v%d" % (T + 5, T + 5, T + 1))
    e("v_and_b32 v%d, 31, v%d" % (T + 6, vLane))
    e("v_lshrrev_b32 v%d, 5, v%d" % (T + 7, vLane))
    e("v_bfe_u32 v%d, v%d, 1, 3" % (T + 8, vLane))
    e("v_xor_b32 v%d, v%d, v%d" % (T + 8, T + 8, T + 7))
    e("v_lshlrev_b32 v%d, 4, v%d" % (T + 8, T + 8))
    e("v_lshl_add_u32 v%d, v%d, 7, v%d" % (T + 8, T + 6, T + 8))
    e("s_lshl_b32 s%d, s%d, 12" % (sT4, sTG))
    e("s_add_u32 s%d, s%d, %d" % (sT4, sT4, XB))
    for s in range(4):
        e("v_xor_b32 v%d, %d, v%d" % (vXr + s, s << 5, T + 8))
        e("v_add_u32 v%d, s%d, v%d" % (vXr + s, sT4, vXr + s))
    e("v_bfe_u32 v%d, v%d, 2, 2" % (T + 9, vLane))
    e("v_and_b32 v%d, 3, v%d" % (T + 10, vLane))
    e("v_bfe_u32 v%d, v%d, 4, 1" % (T + 11, vLane))
    e("v_lshl_add_u32 v%d, v%d, 2, v%d" % (T + 12, T + 11, T + 10))
    e("v_lshl_add_u32 v%d, v%d, 3, v%d" % (T + 13, T + 7, T + 9))
    e("v_and_b32 v%d, 15, v%d" % (vFl, vLane))
    e("v_lshlrev_b32 v%d, 3, v%d" % (vFl, vFl))
    e("s_lshr_b32 s%d, s%d, 2" % (sHalf, sWave))
    e("s_waitcnt lgkmcnt(0)")
    def srd(d, p, n):
        e("s_mov_b32 s%d, s%d" % (d, p)); e("s_mov_b32 s%d, s%d" % (d + 1, p + 1))
        e("s_mov_b32 s%d, %d" % (d + 2, n)); e("s_mov_b32 s%d, 0x20000" % (d + 3))
    srd(SRD_X, sX, 2048 * 896); srd(SRD_W2, sW2, 1792 * 896); srd(SRD_WO, sWO, 448 * 896)
    srd(SRD_WS, sWS, WS_BYTES); srd(SRD_OUT, sOUT, 2048 * 896)
    e("s_lshl_b64 s[%d:%d], s[%d:%d], 2" % (sNonce, sNonce + 1, sNonce, sNonce + 1))
    e("s_or_b32 s%d, s%d, 0x40000000" % (sNonce + 1, sNonce + 1))
    e("s_or_b32 s%d, s2, s%d" % (sT4, sWave))
    e("s_cmp_lg_u32 s%d, 0" % sT4)
    e("s_cbranch_scc1 L_nopub")
    e("v_mov_b32 v%d, s%d" % (T + 20, sNonce))
    e("v_mov_b32 v%d, s%d" % (T + 21, sNonce + 1))
    e("v_mov_b32 v%d, 0" % (T + 22))
    e("s_mov_b64 exec, 1")
    e("global_store_dwordx2 v%d, v[%d:%d], s[%d:%d] sc0 sc1" % (T + 22, T + 20, T + 21, sDBG, sDBG + 1))
    e("s_mov_b64 exec, -1")
    g.lab("L_nopub")
    e("s_lshl_b32 s%d, s%d, 3" % (sT4, sRB))
    e("s_add_u32 s%d, s%d, s%d" % (sT4, sT4, sWave))
    e("s_mul_i32 s%d, s%d, %d" % (sXbase, sT4, 16 * 896))
    e("s_lshl_b32 s%d, s%d, 2" % (sT4, sRB))
    e("s_add_u32 s%d, s%d, s%d" % (sT4, sT4, sTG))
    e("s_mul_i32 s%d, s%d, %d" % (sActBase, sT4, TG_STRIDE))
    e("s_cmp_lt_u32 s%d, 8" % sRole)
    e("s_cbranch_scc1 L_att")

    srd(SRD_W, sW1, 448 * 3584)
    e("s_mov_b32 s%d, %d" % (sWstep, 64 * 3584))
    e("s_mul_i32 s%d, s%d, 448" % (sT4, sJ))
    e("s_and_b32 s%d, s%d, 1" % (sT5, sJ))
    e("s_lshl_b32 s%d, s%d, 6" % (sT0, sT5))
    e("s_add_u32 s%d, s%d, s%d" % (sWbase, sT4, sT0))
    e("s_cmp_eq_u32 s%d, 0" % sT5)
    e("s_cselect_b32 s%d, 384, 0" % sT0)
    e("s_add_u32 s%d, s%d, s%d" % (sSbase, sT4, sT0))
    e("s_lshr_b32 s%d, s%d, 6" % (sTile0, sWbase))
    e("s_add_u32 s%d, s%d, s%d" % (sTile0, sTile0, sHalf))
    e("s_lshr_b32 s%d, s%d, 6" % (sStage, sSbase))
    e("s_mov_b32 s%d, s%d" % (sT0, sB1));
    srd(100 - 0 - 4 + 4 - 4, sB1, 3584) if False else None
    e("s_mov_b32 s%d, s%d" % (SRD_OUT, sB1)); e("s_mov_b32 s%d, s%d" % (SRD_OUT + 1, sB1 + 1)); e("s_mov_b32 s%d, 3584" % (SRD_OUT + 2))
    e("v_lshlrev_b32 v%d, 1, v%d" % (T + 14, T + 6))
    e("v_lshl_add_u32 v%d, v%d, 12, v%d" % (T + 14, T + 7, T + 14))
    for p in range(3):
        e("s_add_u32 s%d, s%d, %d" % (sT0, sTile0, 2 * p))
        e("s_lshl_b32 s%d, s%d, 6" % (sT0, sT0))
        g.vm("buffer_load_ushort v%d, v%d, s[%d:%d], s%d offen" % (vBias + p, T + 14, SRD_OUT, SRD_OUT + 3, sT0), "bias")
    e("s_lshl_b32 s%d, s%d, 6" % (sT0, sStage))
    g.vm("buffer_load_ushort v%d, v%d, s[%d:%d], s%d offen" % (vBias + 3, T + 14, SRD_OUT, SRD_OUT + 3, sT0), "bias")
    e("s_mul_i32 s%d, s%d, %d" % (sT0, sWave, 8 * 3584))
    e("s_add_u32 s%d, s%d, s%d" % (sWbase, sWbase, sT0))
    e("s_add_u32 s%d, s%d, s%d" % (sSbase, sSbase, sT0))
    e("v_mul_u32_u24 v%d, 3584, v%d" % (T + 3, T))
    e("v_lshl_add_u32 v%d, v%d, 4, v%d" % (vWd, T + 5, T + 3))
    e("v_lshrrev_b32 v%d, 2, v%d" % (T + 3, vLane))
    e("v_mul_u32_u24 v%d, 3584, v%d" % (T + 3, T + 3))
    e("v_lshl_add_u32 v%d, v%d, 4, v%d" % (vSd, T + 10, T + 3))
    e("s_lshl_b32 s%d, s%d, 3" % (sT0, sHalf))
    tr_addr(T)
    e("v_lshlrev_b32 v%d, 6, v%d" % (vTrS, T + 13))
    e("v_lshl_add_u32 v%d, v%d, 3, v%d" % (vTrS, T + 12, vTrS))
    e("v_add_u32 v%d, %d, v%d" % (vTrS, SB, vTrS))
    for i in range(1, 4):
        e("v_mov_b32 v%d, 0" % (vBT + i)); e("v_mov_b32 v%d, 0" % (vOne + i))
    e("v_mov_b32 v%d, 0x3f80" % vOne)
    e("s_lshl_b32 s%d, s%d, 11" % (sTile0, sTile0))
    e("s_add_u32 s%d, s%d, s%d" % (sTile0, sTile0, sActBase))
    e("s_lshl_b32 s%d, s%d, 11" % (sStage, sStage))
    e("s_add_u32 s%d, s%d, s%d" % (sStage, sStage, sActBase))
    prologue(False)
    e("s_mov_b32 s%d, s%d" % (SRD_OUT, sOUT)); e("s_mov_b32 s%d, s%d" % (SRD_OUT + 1, sOUT + 1)); e("s_mov_b32 s%d, %d" % (SRD_OUT + 2, 2048 * 896))
    for u in range(7): issue_w(u, RA, 256, "p2")
    issue_s()
    q0 = list(g.q)
    e("s_cmp_lg_u32 s%d, 0" % sHalf)
    e("s_cbranch_scc1 L_ffnB")
    tl = lambda p: ("s%d" % sTile0, 32 * 1024 + p * 4096)
    tile_body(ACC1, vTrB, 128, False, bias=1)
    barrier(); g.stamp(3)
    epi_mish(ACC0, tl(0), "st0")
    g.wait("p2"); barrier(); g.stamp(4)
    tile_body(ACC0, vTrA, 128, False, bias=2)
    g.wait("st0"); barrier(); g.stamp(5)
    only_wave(0, lambda: write_flag(own_fr_lines(), 1, "flag"))
    epi_mish(ACC1, tl(1), "st1")
    g.wait("S") if "S" in g.q else None
    barrier(); g.stamp(6)
    tile_body(ACC1, vTrS, 64, False, bias=3)
    g.wait("st1"); barrier(); g.stamp(7)
    only_wave(0, lambda: write_flag(own_fr_lines(), 2, "flag"))
    epi_mish(ACC0, tl(2), "st2")
    epi_mish(ACC1, ("s%d" % sStage, 32 * 1024), "st3")
    g.wait_all()
    e("s_branch L_cons")
    g.lab("L_ffnB"); g.q = list(q0)
    mfma_fence()
    epi_mish(ACC0, tl(0), "st0")
    barrier(); g.stamp(3)
    tile_body(ACC0, vTrB, 128, False, bias=1)
    g.wait("p2"); barrier(); g.stamp(4)
    mfma_fence()
    epi_mish(ACC0, tl(1), "st1")
    e("v_mov_b32 v%d, v%d" % (vGate, vBias + 2))
    p2_producer_setup()
    for n in range(4): p2_issue_W(n)
    g.wait("st0") if "st0" in g.q else None
    barrier(); g.stamp(5)
    e("v_mov_b32 v%d, v%d" % (vBT, vGate))
    e("s_nop 1")
    tile_body_pre(ACC0, vTrA, 128)
    g.wait("S") if "S" in g.q else None
    barrier(); g.stamp(6)
    fr_off(sSlot, sRB2)
    poll_issue(sSlot)
    mfma_fence()
    epi_mish(ACC0, tl(2), "st2")
    poll_check(sSlot, 1, 0xff00)
    p2_act_base_producer()
    for n in range(3): p2_issue_A(n)
    g.wait("st1") if "st1" in g.q else None
    barrier(); g.stamp(7)
    p2_issue_W(4); p2_issue_W(5)
    g.wait(["A0", "st2"])
    e("s_branch L_prod")

    g.lab("L_att"); g.q = []
    srd(SRD_W, sWQKV, 448 * 2688)
    e("s_mov_b32 s%d, %d" % (sWstep, 64 * 2688))
    e("s_mul_i32 s%d, s%d, 112" % (sWbase, sJ))
    e("s_mul_i32 s%d, s%d, %d" % (sT0, sWave, 8 * 2688))
    e("s_add_u32 s%d, s%d, s%d" % (sWbase, sWbase, sT0))
    e("s_add_u32 s%d, s%d, 896" % (sWbase, sWbase))
    e("v_min_u32 v%d, 6, v%d" % (T + 5, T + 5))
    e("v_mul_u32_u24 v%d, 2688, v%d" % (T + 3, T))
    e("v_lshl_add_u32 v%d, v%d, 4, v%d" % (vWd, T + 5, T + 3))
    e("s_mul_i32 s%d, s%d, 7" % (sT0, sHalf))
    tr_addr(T)
    for h in range(2):
        e("s_lshl_b32 s%d, s%d, 1" % (sT0, sTG))
        e("s_add_u32 s%d, s%d, %d" % (sT0, sT0, h))
        e("s_add_u32 s%d, s%d, s%d" % (sT0, sT0, sRot))
        e("s_cmp_ge_u32 s%d, 7" % sT0)
        e("s_cselect_b32 s%d, 7, 0" % sT1)
        e("s_sub_u32 s%d, s%d, s%d" % (sT0, sT0, sT1))
        e("s_lshl_b32 s%d, s%d, 7" % (sT0, sT0))
        e("s_min_u32 s%d, s%d, 768" % (sT0, sT0))
        e("v_lshl_add_u32 v%d, v%d, 1, s%d" % (T + 15, vLane, sT0))
        g.vm("global_load_ushort v%d, v%d, s[%d:%d]" % (vBias + h, T + 15, sGATE, sGATE + 1), "gate")
    def zero_kv():
        for i in range(4): e("v_mov_b32 v%d, 0" % (T + 16 + i))
        e("s_lshl_b32 s%d, s%d, 13" % (sT0, sJ))
        e("s_lshl_b32 s%d, s%d, 9" % (sT1, sRB))
        e("s_add_u32 s%d, s%d, s%d" % (sT0, sT0, sT1))
        e("s_add_u32 s%d, s%d, %d" % (sT0, sT0, WS_KV))
        e("s_mov_b32 exec_hi, 0")
        e("buffer_store_dwordx4 v[%d:%d], v%d, s[%d:%d], s%d offen sc0 sc1" % (T + 16, T + 19, vL16, SRD_WS, SRD_WS + 3, sT0))
        e("s_mov_b64 exec, -1")
    only_wave(1, zero_kv)
    e("v_cmp_eq_u32 vcc, 28, v%d" % (T + 6))
    e("v_mov_b32 v%d, 0x3f803f80" % (T + 16 + 4))
    e("s_nop 0")
    e("v_cndmask_b32 v%d, 0, v%d, vcc" % (vVpad, T + 16 + 4))
    prologue(True)
    for u in range(7): issue_w(u, RA, -896, "Q")
    q0 = list(g.q)
    PADM = (0xf << 28) | (0xf << 60)
    def kv_partial():
        for i in range(8):
            e("v_cvt_pk_bf16_f32 v%d, v%d, v%d" % (PV + i, ACC1 + 2 * i, ACC1 + 2 * i + 1))
        e("s_mov_b32 exec_lo, 0xf0000000"); e("s_mov_b32 exec_hi, 0xf0000000")
        for i in range(8):
            e("v_mov_b32 v%d, 0" % (PK + i)); e("v_mov_b32 v%d, v%d" % (PV + i, vVpad))
        e("s_mov_b64 exec, -1")
        e("s_nop 1")
        e("v_mfma_f32_32x32x16_bf16 v[%d:%d], v[%d:%d], v[%d:%d], 0" % (ACC0, ACC0 + 15, PK, PK + 3, PV, PV + 3))
        e("v_mfma_f32_32x32x16_bf16 v[%d:%d], v[%d:%d], v[%d:%d], v[%d:%d]" % (ACC0, ACC0 + 15, PK + 4, PK + 7, PV + 4, PV + 7, ACC0, ACC0 + 15))
        e("s_lshl_b32 s%d, s%d, 12" % (sT0, sWave))
        e("s_add_u32 s%d, s%d, %d" % (sT0, sT0, KVSCR))
        e("v_add_u32 v%d, s%d, v%d" % (TMP, sT0, vL16))
        mfma_fence()
        for qd in range(4):
            e("ds_write_b128 v%d, v[%d:%d] offset:%d" % (TMP, ACC0 + 4 * qd, ACC0 + 4 * qd + 3, qd * 1024))
    def kv_reduce(hd):
        e("s_lshl_b32 s%d, s%d, 10" % (sT0, sTG))
        e("s_add_u32 s%d, s%d, %d" % (sT0, sT0, KVSCR + hd * 16384))
        e("v_add_u32 v%d, s%d, v%d" % (TMP + 16, sT0, vL16))
        for p in range(4):
            e("ds_read_b128 v[%d:%d], v%d offset:%d" % (TMP + 4 * p, TMP + 4 * p + 3, TMP + 16, p * 4096))
        e("s_lshl_b32 s%d, s%d, 7" % (sSlot, sJ))
        e("s_add_u32 s%d, s%d, %d" % (sSlot, sSlot, WS_FH))
        poll_issue(sSlot)
        e("s_waitcnt lgkmcnt(0)")
        for i in range(4):
            e("v_add_f32 v%d, v%d, v%d" % (TMP + i, TMP + i, TMP + 4 + i))
            e("v_add_f32 v%d, v%d, v%d" % (TMP + 8 + i, TMP + 8 + i, TMP + 12 + i))
        for i in range(4):
            e("v_add_f32 v%d, v%d, v%d" % (TMP + i, TMP + i, TMP + 8 + i))
        poll_check(sSlot, 1, 0xffff)
        e("s_lshl_b32 s%d, s%d, 13" % (sT0, sJ))
        e("s_lshl_b32 s%d, s%d, 10" % (sT1, sTG))
        e("s_add_u32 s%d, s%d, s%d" % (sT0, sT0, sT1))
        e("s_add_u32 s%d, s%d, %d" % (sT0, sT0, WS_KV + hd * 4096))
        e("v_lshlrev_b32 v%d, 2, v%d" % (TMP + 17, vLane))
        for i in range(4):
            g.vm("buffer_atomic_add_f32 v%d, v%d, s[%d:%d], s%d offen offset:%d" % (TMP + i, TMP + 17, SRD_WS, SRD_WS + 3, sT0, i * 256), "atom")
    def pq_pads():
        e("s_mov_b32 exec_lo, 0")
        e("v_mov_b32 v%d, 0" % (PK + 6)); e("v_mov_b32 v%d, 0" % (PK + 7))
        e("s_mov_b64 exec, -1")
    def o_compute():
        e("s_lshl_b32 s%d, s%d, 12" % (sT0, sHalf if False else sStage))
        e("s_add_u32 s%d, s%d, %d" % (sT0, sT0, MISC))
        e("v_lshl_add_u32 v%d, v%d, 2, s%d" % (TMP + 16, vLane, sT0))
        for i in range(8):
            e("ds_read2st64_b32 v[%d:%d], v%d offset0:%d offset1:%d" % (TMP + 2 * i, TMP + 2 * i + 1, TMP + 16, 2 * i, 2 * i + 1))
        e("s_waitcnt lgkmcnt(0)")
        for i in range(8):
            e("v_cvt_pk_bf16_f32 v%d, v%d, v%d" % (PV + i, TMP + 2 * i, TMP + 2 * i + 1))
        e("s_nop 1")
        e("v_mfma_f32_32x32x16_bf16 v[%d:%d], v[%d:%d], v[%d:%d], 0" % (ACC0, ACC0 + 15, PV, PV + 3, PK, PK + 3))
        e("v_mfma_f32_32x32x16_bf16 v[%d:%d], v[%d:%d], v[%d:%d], v[%d:%d]" % (ACC0, ACC0 + 15, PV + 4, PV + 7, PK + 4, PK + 7, ACC0, ACC0 + 15))
        mfma_fence()
        e("v_mov_b32 v%d, v%d" % (TMP, ACC0 + 12))
        e("v_mov_b32 v%d, v%d" % (TMP + 1, ACC0 + 12))
        e("s_nop 1")
        e("v_permlane32_swap_b32 v%d, v%d" % (TMP, TMP + 1))
        e("s_nop 1")
        e("v_add_f32 v%d, s%d, v%d" % (TMP + 1, sEps, TMP + 1))
        e("v_rcp_f32 v%d, v%d" % (TMP + 1, TMP + 1))
        e("s_nop 0")
        for i in range(16):
            e("v_mul_f32 v%d, v%d, v%d" % (ACC0 + i, ACC0 + i, TMP + 1))
        for i in range(8):
            e("v_cvt_pk_bf16_f32 v%d, v%d, v%d" % (PK + i, ACC0 + 2 * i, ACC0 + 2 * i + 1))
        pq_pads()
        e("s_lshl_b32 s%d, s%d, 2" % (sT1, sRB))
        e("s_add_u32 s%d, s%d, s%d" % (sT1, sT1, sTG))
        e("s_mul_i32 s%d, s%d, %d" % (sT1, sT1, TG_STRIDE))
        e("s_lshl_b32 s%d, s%d, 1" % (sT0, sJ))
        e("s_add_u32 s%d, s%d, s%d" % (sT0, sT0, sStage))
        e("s_lshl_b32 s%d, s%d, 11" % (sT0, sT0))
        e("s_add_u32 s%d, s%d, s%d" % (sT0, sT0, sT1))
        g.vm("buffer_store_dwordx4 v[%d:%d], v%d, s[%d:%d], s%d offen sc0 sc1" % (PK, PK + 3, vL16, SRD_WS, SRD_WS + 3, sT0), "so")
        g.vm("buffer_store_dwordx4 v[%d:%d], v%d, s[%d:%d], s%d offen offset:1024 sc0 sc1" % (PK + 4, PK + 7, vL16, SRD_WS, SRD_WS + 3, sT0), "so")
    e("s_mov_b32 s%d, s%d" % (sStage, sHalf))
    e("s_cmp_lg_u32 s%d, 0" % sHalf)
    e("s_cbranch_scc1 L_attB")
    tile_body(ACC1, vTrB, 128, True)
    barrier(); g.stamp(3)
    epi_phi(ACC0, PK)
    kv_partial()
    g.wait("Q", lgkm=0); barrier(); g.stamp(4)
    tile_body(ACC0, vTrA, 128, False)
    barrier(); g.stamp(5)
    kv_reduce(1)
    epi_phi(ACC0, PK)
    pq_pads()
    g.wait("atom"); barrier(); g.stamp(6)
    only_wave(0, lambda: write_flag(own_fh_lines(), 2, "flag"))
    poll_issue(sSlot)
    poll_check(sSlot, 2, 0xffff, first_wait=False); g.q = []
    e("s_lshl_b32 s%d, s%d, 13" % (sT0, sJ))
    e("s_lshl_b32 s%d, s%d, 11" % (sT1, sTG))
    e("s_add_u32 s%d, s%d, s%d" % (sT0, sT0, sT1))
    e("s_add_u32 s%d, s%d, %d" % (sT0, sT0, WS_KV))
    dma(SRD_WS, vL16, "s%d" % sT0, "s_add_u32 m0, s%d, %d" % (sT1, MISC), "kvl", sc="sc1")
    dma(SRD_WS, vL16, "s%d" % sT0, None, "kvl", imm=1024, sc="sc1", setm0=False)
    g.wait_all(); barrier(); g.stamp(7)
    o_compute()
    g.wait_all()
    e("s_branch L_cons")
    g.lab("L_attB"); g.q = list(q0)
    mfma_fence()
    epi_phi(ACC0, PK)
    barrier(); g.stamp(3)
    tile_body(ACC1, vTrB, 128, True)
    g.wait("Q"); barrier(); g.stamp(4)
    mfma_fence()
    kv_partial()
    e("v_bfe_u32 v%d, v%d, 1, 1" % (TMP + 1, vLane))
    e("v_lshlrev_b32 v%d, 6, v%d" % (TMP + 1, TMP + 1))
    e("v_xor_b32 v%d, 0x70, v%d" % (TMP + 1, TMP + 1))
    e("v_lshl_add_u32 v%d, v%d, 7, v%d" % (TMP + 1, vLane, TMP + 1))
    e("s_lshl_b32 s%d, s%d, 14" % (sT0, sTG))
    e("v_add_u32 v%d, s%d, v%d" % (TMP + 1, sT0, TMP + 1))
    e("v_mov_b32 v%d, v%d" % (TMP + 2, vBias)); e("v_mov_b32 v%d, 0" % (TMP + 3))
    e("v_mov_b32 v%d, v%d" % (TMP + 4, vBias + 1)); e("v_mov_b32 v%d, 0" % (TMP + 5))
    e("ds_write_b64 v%d, v[%d:%d] offset:%d" % (TMP + 1, TMP + 2, TMP + 3, RA))
    sk = g.newlab("L_nog")
    e("s_cmp_eq_u32 s%d, 3" % sTG)
    e("s_cbranch_scc1 %s" % sk)
    e("ds_write_b64 v%d, v[%d:%d] offset:%d" % (TMP + 1, TMP + 4, TMP + 5, RA + 8192))
    g.lab(sk)
    kv_reduce(0)
    p2_producer_setup()
    sk = g.newlab("L_idle1")
    e("s_cmp_ge_u32 s2, 224"); e("s_cbranch_scc1 %s" % sk)
    sv = list(g.q)
    for n in range(4): p2_issue_W(n)
    g.q = sv
    g.lab(sk)
    e("s_waitcnt lgkmcnt(0)")
    barrier(); g.stamp(5)
    tile_body(ACC0, vTrA, 128, False)
    g.wait_all()
    barrier(); g.stamp(6)
    mfma_fence()
    sk = g.newlab("L_nog2")
    e("s_cmp_lg_u32 s%d, 0" % sJ); e("s_cbranch_scc1 %s" % sk)
    e("v_mul_f32 v%d, s%d, v%d" % (TMP, sLog2e, ACC0 + 12))
    e("v_exp_f32_e64 v%d, -v%d" % (TMP, TMP))
    e("s_nop 0")
    e("v_add_f32 v%d, 1.0, v%d" % (TMP, TMP))
    e("v_rcp_f32 v%d, v%d" % (TMP, TMP))
    e("v_lshlrev_b32 v%d, 2, v%d" % (TMP + 1, vLane))
    e("s_lshl_b32 s%d, s%d, 2" % (sT0, sRB))
    e("s_add_u32 s%d, s%d, s%d" % (sT0, sT0, sTG))
    e("s_lshl_b32 s%d, s%d, 7" % (sT0, sT0))
    e("s_add_u32 s%d, s%d, %d" % (sT0, sT0, WS_G - 128))
    e("s_mov_b32 exec_lo, 0")
    e("buffer_store_dword v%d, v%d, s[%d:%d], s%d offen sc0 sc1" % (TMP, TMP + 1, SRD_WS, SRD_WS + 3, sT0))
    e("s_mov_b64 exec, -1")
    g.lab(sk)
    epi_phi(ACC0, PK)
    pq_pads()
    sk = g.newlab("L_idle2")
    e("s_cmp_ge_u32 s2, 224"); e("s_cbranch_scc1 %s" % sk)
    fr_off(sSlot, sRB2)
    poll_issue(sSlot)
    poll_check(sSlot, 1, 0xff00, first_wait=False)
    p2_act_base_producer()
    for n in range(3): p2_issue_A(n)
    p2_issue_W(4); p2_issue_W(5)
    g.lab(sk)
    barrier(); g.stamp(7)
    o_compute()
    g.wait_all()
    e("s_branch L_prod")

    g.lab("L_prod")
    g.q = ["A1"] * 4 + ["A2"] * 4
    barrier(); g.stamp(8)
    e("s_cmp_ge_u32 s2, 224"); e("s_cbranch_scc1 L_fin")
    for n in range(1, 18):
        g.wait("A%d" % n)
        barrier()
        if n + 2 <= 17: p2_issue_A(n + 2)
        if n + 5 <= 17: p2_issue_W(n + 5)
    g.stamp(9)
    e("s_branch L_fin")

    g.lab("L_cons"); g.q = []
    barrier(); g.stamp(8)
    only_wave(0, lambda: write_flag(own_fr_lines(), 3, "flag"))
    e("s_cmp_ge_u32 s2, 224"); e("s_cbranch_scc1 L_fin")
    T = TMP
    vA, vW, vAr, vWr = T + 20, T + 21, T + 22, T + 23
    AF = 96 + 16
    e("s_and_b32 s%d, s%d, 1" % (sT0, sWave))
    e("s_lshr_b32 s%d, s%d, 1" % (sT1, sWave))
    e("s_lshl_b32 s%d, s%d, 12" % (sT2, sT1))
    e("v_add_u32 v%d, s%d, v%d" % (vAr, sT2, vL16))
    e("v_bfe_u32 v%d, v%d, 2, 2" % (T + 9, vLane))
    e("v_and_b32 v%d, 3, v%d" % (T + 10, vLane))
    e("v_bfe_u32 v%d, v%d, 4, 1" % (T + 11, vLane))
    e("v_lshrrev_b32 v%d, 5, v%d" % (T + 7, vLane))
    e("v_lshl_add_u32 v%d, v%d, 2, v%d" % (T + 12, T + 11, T + 10))
    e("v_lshl_add_u32 v%d, v%d, 2, v%d" % (T + 13, T + 7, T + 9))
    e("s_lshl_b32 s%d, s%d, 3" % (sT0, sT0))
    tr_addr(T, dst=vWr, second=False)
    e("s_mov_b32 s%d, 0" % sN)
    e("s_mov_b32 s%d, 0" % sAslot)
    e("s_mov_b32 s%d, %d" % (sWslot, W2RING + 2 * 16384))
    for i in range(16):
        e("v_mov_b32 v%d, 0" % (ACC0 + i)); e("v_mov_b32 v%d, 0" % (ACC1 + i))
    fr_off(sSlot, sRB2)
    def iteration(acc):
        e("v_add_u32 v%d, s%d, v%d" % (vA, sAslot, vAr))
        e("v_add_u32 v%d, s%d, v%d" % (vW, sWslot, vWr))
        def rd(s):
            w = WF + 4 * (s % 4); a = AF + 4 * (s % 4)
            off = (s // 4) * 8192
            e("ds_read_b64_tr_b16 v[%d:%d], v%d offset:%d" % (w, w + 1, vW, off + (16 * (s % 4)) * 128))
            e("ds_read_b64_tr_b16 v[%d:%d], v%d offset:%d" % (w + 2, w + 3, vW, off + (16 * (s % 4) + 8) * 128))
            e("ds_read_b128 v[%d:%d], v%d offset:%d" % (a, a + 3, vA, off + (s % 4) * 1024))
        D = 3
        for s in range(D): rd(s)
        for s in range(8):
            rem = min(7, s + D - 1) - s
            e("s_waitcnt lgkmcnt(%d)" % (3 * rem))
            w = WF + 4 * (s % 4); a = AF + 4 * (s % 4)
            e("v_mfma_f32_32x32x16_bf16 v[%d:%d], v[%d:%d], v[%d:%d], v[%d:%d]" % (acc, acc + 15, w, w + 3, a, a + 3, acc, acc + 15))
            if s + D < 8: rd(s + D)
        e("s_add_u32 s%d, s%d, 16384" % (sAslot, sAslot))
        e("s_cmp_eq_u32 s%d, %d" % (sAslot, 3 * 16384))
        e("s_cselect_b32 s%d, 0, s%d" % (sAslot, sAslot))
        e("s_add_u32 s%d, s%d, 16384" % (sWslot, sWslot))
        e("s_cmp_eq_u32 s%d, %d" % (sWslot, W2RING + 6 * 16384))
        e("s_cselect_b32 s%d, %d, s%d" % (sWslot, W2RING, sWslot))
        e("s_add_u32 s%d, s%d, 1" % (sN, sN))
    e("s_branch L_c1")
    g.lab("L_c0")
    e("s_cmp_lg_u32 s%d, 0" % sWave); e("s_cbranch_scc1 L_cbar")
    e("s_mov_b32 s%d, 0" % sStage)
    e("s_cmp_eq_u32 s%d, 2" % sN)
    e("s_cselect_b32 s%d, 2, s%d" % (sStage, sStage))
    e("s_cmp_eq_u32 s%d, 6" % sN)
    e("s_cselect_b32 s%d, 3, s%d" % (sStage, sStage))
    e("s_cmp_eq_u32 s%d, 12" % sN)
    e("s_cselect_b32 s%d, 3, s%d" % (sStage, sStage))
    e("s_cselect_b32 s%d, 0xff, 0xff00" % sMask) if False else None
    e("s_mov_b32 s%d, 0xff00" % sMask)
    e("s_cselect_b32 s%d, 0xff, s%d" % (sMask, sMask))
    e("s_cmp_eq_u32 s%d, 0" % sStage); e("s_cbranch_scc1 L_cbar")
    poll_issue(sSlot)
    poll_check(sSlot, "s%d" % sStage, None, first_wait=False)
    g.lab("L_cbar")
    barrier()
    g.lab("L_c1")
    iteration(ACC1)
    e("s_cmp_lt_u32 s%d, 14" % sN); e("s_cbranch_scc1 L_c0")
    e("v_and_b32 v%d, 31, v%d" % (T + 6, vLane))
    e("v_lshlrev_b32 v%d, 2, v%d" % (T + 18, T + 6))
    e("s_lshr_b32 s%d, s%d, 1" % (sT1, sWave))
    e("s_lshl_b32 s%d, s%d, 1" % (sT0, sTB))
    e("s_add_u32 s%d, s%d, s%d" % (sT0, sT0, sT1))
    e("s_lshl_b32 s%d, s%d, 7" % (sT2, sT0))
    e("s_add_u32 s%d, s%d, %d" % (sT2, sT2, WS_G))
    e("buffer_load_dword v%d, v%d, s[%d:%d], s%d offen sc1" % (T + 19, T + 18, SRD_WS, SRD_WS + 3, sT2))
    e("s_mul_i32 s%d, s%d, %d" % (sXbase, sT0, 32 * 896))
    e("s_lshl_b32 s%d, s%d, 7" % (sT2, sCB))
    e("s_add_u32 s%d, s%d, s%d" % (sXbase, sXbase, sT2))
    e("s_and_b32 s%d, s%d, 1" % (sT2, sWave))
    e("s_lshl_b32 s%d, s%d, 6" % (sT2, sT2))
    e("s_add_u32 s%d, s%d, s%d" % (sXbase, sXbase, sT2))
    e("v_mul_u32_u24 v%d, 896, v%d" % (T + 17, T + 6))
    e("v_lshl_add_u32 v%d, v%d, 4, v%d" % (T + 17, T + 7, T + 17))
    g.lab("L_c2")
    barrier()
    iteration(ACC0)
    e("s_cmp_lt_u32 s%d, 18" % sN); e("s_cbranch_scc1 L_c2")
    g.stamp(9)
    e("s_waitcnt vmcnt(0)")
    mfma_fence()
    for i in range(16):
        e("v_sub_f32 v%d, v%d, v%d" % (ACC0 + i, ACC0 + i, ACC1 + i))
    for i in range(16):
        e("v_fma_f32 v%d, v%d, v%d, v%d" % (ACC0 + i, ACC0 + i, T + 19, ACC1 + i))
    for i in range(8):
        e("v_cvt_pk_bf16_f32 v%d, v%d, v%d" % (WF + i, ACC0 + 2 * i, ACC0 + 2 * i + 1))
    e("s_nop 1")
    for qq in range(2):
        e("v_permlane32_swap_b32 v%d, v%d" % (WF + 4 * qq, WF + 4 * qq + 2))
        e("v_permlane32_swap_b32 v%d, v%d" % (WF + 4 * qq + 1, WF + 4 * qq + 3))
    e("s_nop 1")
    for qq in range(2):
        e("buffer_store_dwordx4 v[%d:%d], v%d, s[%d:%d], s%d offen offset:%d" % (WF + 4 * qq, WF + 4 * qq + 3, T + 17, SRD_OUT, SRD_OUT + 3, sXbase, qq * 32))
    g.lab("L_fin")
    if cfg.stamps:
        e("s_waitcnt vmcnt(0)")
        g.stamp(10)
        e("s_lshl_b32 s%d, s2, 3" % sT0)
        e("s_add_u32 s%d, s%d, s%d" % (sT0, sT0, sWave))
        e("s_lshl_b32 s%d, s%d, 6" % (sT0, sT0))
        e("s_add_u32 s%d, s%d, %d" % (sT1, sWS, WS_STAMP))
        e("s_addc_u32 s%d, s%d, 0" % (sT2, sWS + 1))
        e("s_mov_b32 s%d, s%d" % (sMask, sT1)); e("s_mov_b32 s%d, s%d" % (sMask + 1, sT2))
        e("v_mov_b32 v%d, s%d" % (TMP, sT0))
        e("v_mov_b32 v%d, s98" % (TMP + 2))
        e("v_accvgpr_write_b32 a127, v%d" % (TMP + 2))
        e("s_getreg_b32 s%d, hwreg(HW_REG_HW_ID)" % sT3)
        e("v_mov_b32 v%d, s%d" % (TMP + 2, sT3))
        e("v_accvgpr_write_b32 a126, v%d" % (TMP + 2))
        e("s_getreg_b32 s%d, hwreg(HW_REG_XCC_ID)" % sT3)
        e("v_mov_b32 v%d, s%d" % (TMP + 2, sT3))
        e("v_accvgpr_write_b32 a125, v%d" % (TMP + 2))
        e("s_mov_b64 exec, 1")
        e("s_nop 1")
        for i in range(4):
            e("global_store_dwordx4 v%d, a[%d:%d], s[%d:%d] offset:%d" % (TMP, 112 + 4 * i, 115 + 4 * i, sMask, sMask + 1, 16 * i))
    g.lab("L_end")
    e("s_endpgm")

def tr_addr(T, dst=None, second=True):
    d = vTrA if dst is None else dst
    e("v_add_u32 v%d, s%d, v%d" % (T + 14, sT0, T + 12))
    e("v_lshrrev_b32 v%d, 1, v%d" % (T + 15, T + 14))
    e("v_and_b32 v%d, 2, v%d" % (T + 16, T + 9))
    e("v_lshlrev_b32 v%d, 1, v%d" % (T + 16, T + 16))
    e("v_xor_b32 v%d, v%d, v%d" % (T + 15, T + 15, T + 16))
    e("v_and_b32 v%d, 1, v%d" % (T + 14, T + 14))
    e("v_lshlrev_b32 v%d, 3, v%d" % (T + 14, T + 14))
    e("v_lshl_add_u32 v%d, v%d, 4, v%d" % (T + 14, T + 15, T + 14))
    e("v_lshl_add_u32 v%d, v%d, 7, v%d" % (d, T + 13, T + 14))
    if second:
        e("v_add_u32 v%d, %d, v%d" % (vTrB, RB, vTrA))

def tile_body_pre(acc, vtr, rowbytes, depth=3):
    def rd(s):
        w = WF + 4 * (s % 4)
        e("ds_read_b64_tr_b16 v[%d:%d], v%d offset:%d" % (w, w + 1, vtr, (16 * s) * rowbytes))
        e("ds_read_b64_tr_b16 v[%d:%d], v%d offset:%d" % (w + 2, w + 3, vtr, (16 * s + 4) * rowbytes))
    for s in range(depth): rd(s)
    e("v_mfma_f32_32x32x16_bf16 v[%d:%d], v[%d:%d], v[%d:%d], 0" % (acc, acc + 15, vBT, vBT + 3, vOne, vOne + 3))
    for s in range(28):
        rem = min(27, s + depth - 1) - s
        e("s_waitcnt lgkmcnt(%d)" % (2 * rem))
        mfma(acc, WF + 4 * (s % 4), 4 * s, False)
        if s + depth < 28: rd(s + depth)

def main():
    out = sys.argv[1]
    for a in sys.argv[2:]:
        k, v = a.split("=")
        setattr(cfg, k, int(v))
    build()
    K = NAME + "_kernel"
    hdr = "; gated mix: linear attention block + mish FFN, single persistent launch (generated by gen.py)\n"
    hdr += "; @launch grid=(256,1,1) block=(512,1,1) lds=%d\n" % LDS_BYTES
    hdr += '.amdgcn_target "amdgcn-amd-amdhsa--gfx950"\n.text\n.globl %s\n.p2align 8\n.type %s,@function\n%s:\n' % (K, K, K)
    nag = 128 if cfg.stamps else NAG
    ftr = '''.section .rodata,"a"
.p2align 6
.amdhsa_kernel %s
  .amdhsa_next_free_vgpr %d
  .amdhsa_next_free_sgpr 102
  .amdhsa_accum_offset %d
  .amdhsa_group_segment_fixed_size 0
  .amdhsa_kernarg_size 88
  .amdhsa_user_sgpr_count 2
  .amdhsa_user_sgpr_kernarg_segment_ptr 1
  .amdhsa_system_sgpr_workgroup_id_x 1
.end_amdhsa_kernel
''' % (K, NVG + nag, NVG)
    open(out, "w").write(hdr + "\n".join(g.L) + "\n" + ftr)
main()
```

```python
import sys
NAME = "gated_mix__linear_attn_block__dense_activation_mish__prompt"

class Cfg:
    stamps = False
    spin_limit = 1 << 20
    dbgwg = -1
cfg = Cfg()

WS_ACT = 0
TG_STRIDE = 144 * 1024
WS_KV = 0x1000000
WS_G = WS_KV + 0x10000
WS_FH = WS_G + 0x2000
WS_FR = WS_FH + 0x400
WS_BYTES = 0x1100000
WS_STAMP = 0x8000000

RA = 0
XB = 57344
MISC = XB
SB = XB
RB = 106496
W2RING = 65536
KVSCR = 65536
LDS_BYTES = 163840

sX, sWQKV, sWO, sW1, sB1, sW2, sGATE, sOUT, sDBG, sWS = 4, 6, 8, 12, 14, 16, 18, 20, 22, 24
SRD_X, SRD_W, SRD_W2, SRD_WO, SRD_WS, SRD_OUT = 28, 32, 36, 40, 44, 48
sWave, sRB, sJ, sRot, sTB, sCB, sRole, sTG = 52, 53, 54, 55, 56, 57, 58, 59
sNonce = 60
sT0, sT1, sT2, sT3, sT4, sT5 = 62, 63, 64, 65, 66, 67
sXbase, sWbase, sWstep, sKc = 68, 69, 70, 71
sLog2e, sEps = 72, 73
sActBase = 74
sMask = 76
sSlot = 78
sCnt = 79
sRotA = 80
sAslot, sWslot, sN = 81, 82, 83
sSbase = 84
sStage = 85
sP2, sHalf = 86, 87
sTile0 = 88
sExec = 90
sRB2 = 92
sStamp = 94
sW8 = 96
vTid, vLane, vXd0, vXd1, vWd, vSd = 0, 1, 2, 3, 4, 5
vXr = 6
vTrA, vTrB, vTrS, vL16 = 10, 11, 12, 13
vBias = 14
vFl = 18
vNon = 20
vBT = 24
vOne = 28
ACC0, ACC1 = 32, 48
WF = 64
TMP = 80
PK = 112
PV = 120
vGate = 19
vVpad = 22
vW2d = 14
NVG = 128
NAG = 112

class Gen:
    def __init__(self):
        self.L = []
        self.q = []
        self.nlab = 0
        self.stampn = 0
    def e(self, s):
        self.L.append("  " + s)
    def lab(self, s):
        self.L.append(s + ":")
    def newlab(self, p="L"):
        self.nlab += 1
        return "%s_%d" % (p, self.nlab)
    def c(self, s):
        self.L.append("  ; " + s)
    def vm(self, s, tag):
        self.e(s); self.q.append(tag)
    def wait(self, tags, lgkm=None):
        if isinstance(tags, str): tags = [tags]
        last = -1
        for i, t in enumerate(self.q):
            if t in tags: last = i
        n = len(self.q) - 1 - last
        assert last >= 0, ("tag not in queue", tags, self.q)
        assert n <= 63
        self.e("s_waitcnt vmcnt(%d)%s" % (n, "" if lgkm is None else " lgkmcnt(%d)" % lgkm))
        self.q = self.q[last + 1:]
    def wait_all(self):
        self.e("s_waitcnt vmcnt(0)"); self.q = []
    def stamp(self, idx):
        if not cfg.stamps: return
        self.e("s_memtime s[%d:%d]" % (sStamp, sStamp + 1))
        self.e("s_waitcnt lgkmcnt(0)")
        self.e("v_writelane_b32 v126, s%d, %d" % (sStamp, idx)) if False else None
        self.e("v_mov_b32 v%d, s%d" % (TMP + 30, sStamp))
        self.e("v_accvgpr_write_b32 a%d, v%d" % (112 + idx, TMP + 30))

g = Gen()
e = g.e

def dma(srd, voff, soff, m0expr, tag, imm=0, sc="", setm0=True):
    if setm0:
        e(m0expr)
        e("s_nop 0")
    g.vm("buffer_load_dwordx4 v%d, s[%d:%d], %s offen%s%s lds" % (voff, srd, srd + 3, soff, (" offset:%d" % imm) if imm else "", (" " + sc) if sc else ""), tag)

def rot_chunk(dst, u):
    e("s_add_u32 s%d, s%d, %d" % (dst, sRot, u))
    e("s_cmp_ge_u32 s%d, 7" % dst)
    e("s_cselect_b32 s%d, 7, 0" % sT5)
    e("s_sub_u32 s%d, s%d, s%d" % (dst, dst, sT5))

def issue_x(u):
    rot_chunk(sKc, u)
    e("s_lshl_b32 s%d, s%d, 7" % (sT0, sKc))
    e("s_add_u32 s%d, s%d, s%d" % (sT0, sT0, sXbase))
    e("s_lshl_b32 s%d, s%d, 11" % (sT1, sWave))
    dma(SRD_X, vXd0, "s%d" % sT0, "s_add_u32 m0, s%d, %d" % (sT1, XB + (u % 3) * 16384), "x%d" % u)
    dma(SRD_X, vXd1, "s%d" % sT0, None, "x%d" % u, imm=1024, setm0=False)

def issue_w(u, region, colbytes, tag):
    rot_chunk(sKc, u)
    e("s_mul_i32 s%d, s%d, s%d" % (sT0, sKc, sWstep))
    e("s_add_u32 s%d, s%d, s%d" % (sT0, sT0, sWbase))
    if colbytes:
        e("s_add_u32 s%d, s%d, %d" % (sT0, sT0, colbytes))
    e("s_lshl_b32 s%d, s%d, 10" % (sT1, sWave))
    dma(SRD_W, vWd, "s%d" % sT0, "s_add_u32 m0, s%d, %d" % (sT1, region + u * 8192), tag)

def issue_s():
    e("s_mov_b32 exec_hi, 0")
    for u in range(7):
        rot_chunk(sKc, u)
        e("s_mul_i32 s%d, s%d, s%d" % (sT0, sKc, sWstep))
        e("s_add_u32 s%d, s%d, s%d" % (sT0, sT0, sSbase))
        e("s_lshl_b32 s%d, s%d, 9" % (sT1, sWave))
        dma(SRD_W, vSd, "s%d" % sT0, "s_add_u32 m0, s%d, %d" % (sT1, SB + u * 4096), "S")
    e("s_mov_b64 exec, -1")

def mfma(acc, wf, xf, tokcol, first_c=None):
    c = first_c if first_c is not None else "v[%d:%d]" % (acc, acc + 15)
    W = "v[%d:%d]" % (wf, wf + 3); X = "a[%d:%d]" % (xf, xf + 3)
    if tokcol:
        e("v_mfma_f32_32x32x16_bf16 v[%d:%d], %s, %s, %s" % (acc, acc + 15, X, W, c))
    else:
        e("v_mfma_f32_32x32x16_bf16 v[%d:%d], %s, %s, %s" % (acc, acc + 15, W, X, c))

def bias_mfma(acc, bi):
    e("v_mov_b32 v%d, v%d" % (vBT, vBias + bi))
    e("s_nop 1")
    e("v_mfma_f32_32x32x16_bf16 v[%d:%d], v[%d:%d], v[%d:%d], 0" % (acc, acc + 15, vBT, vBT + 3, vOne, vOne + 3))

def tile_body(acc, vtr, rowbytes, tokcol, bias=None, depth=3):
    def rd(s):
        w = WF + 4 * (s % 4)
        e("ds_read_b64_tr_b16 v[%d:%d], v%d offset:%d" % (w, w + 1, vtr, (16 * s) * rowbytes))
        e("ds_read_b64_tr_b16 v[%d:%d], v%d offset:%d" % (w + 2, w + 3, vtr, (16 * s + 4) * rowbytes))
    for s in range(depth): rd(s)
    if bias is not None:
        bias_mfma(acc, bias)
    for s in range(28):
        rem = min(27, s + depth - 1) - s
        e("s_waitcnt lgkmcnt(%d)" % (2 * rem))
        mfma(acc, WF + 4 * (s % 4), 4 * s, tokcol, first_c=("0" if (s == 0 and bias is None) else None))
        if s + depth < 28: rd(s + depth)

def mfma_fence():
    e("s_nop 7"); e("s_nop 4")

def epi_mish(acc, kstep_off, tag):
    T = TMP
    G = 8
    for b in range(0, 16, G):
        r = range(b, b + G)
        for i in r: e("v_mul_f32 v%d, s%d, v%d" % (T + i - b, sLog2e, acc + i))
        for i in r: e("v_exp_f32 v%d, v%d" % (T + i - b, T + i - b))
        for i in r: e("v_fma_f32 v%d, v%d, 0.5, 1.0" % (T + 8 + i - b, T + i - b))
        for i in r: e("v_fma_f32 v%d, v%d, v%d, 1.0" % (T + i - b, T + i - b, T + 8 + i - b))
        for i in r: e("v_rcp_f32 v%d, v%d" % (T + i - b, T + i - b))
        for i in r: e("v_fma_f32 v%d, -v%d, v%d, v%d" % (T + i - b, acc + i, T + i - b, acc + i))
        for i in range(0, G, 2):
            e("v_cvt_pk_bf16_f32 v%d, v%d, v%d" % (PK + (b + i) // 2, T + i, T + i + 1))
        e("s_add_u32 s%d, %s, %d" % (sT0, kstep_off[0], kstep_off[1] + (b // 8) * 1024))
        g.vm("buffer_store_dwordx4 v[%d:%d], v%d, s[%d:%d], s%d offen sc0 sc1" % (PK + b // 2, PK + b // 2 + 3, vL16, SRD_WS, SRD_WS + 3, sT0), tag)

def epi_phi(acc, dst):
    T = TMP
    for b in range(0, 16, 8):
        r = range(b, b + 8)
        for i in r: e("v_mul_f32 v%d, s%d, v%d" % (T + i - b, sLog2e, acc + i))
        for i in r: e("v_exp_f32_e64 v%d, v%d clamp" % (T + i - b, T + i - b))
        for i in r: e("v_max_f32 v%d, 0, v%d" % (T + 8 + i - b, acc + i))
        for i in r: e("v_add_f32 v%d, v%d, v%d" % (T + i - b, T + i - b, T + 8 + i - b))
        for i in r: e("v_add_f32 v%d, s%d, v%d" % (T + i - b, sEps, T + i - b))
        for i in range(0, 8, 2):
            e("v_cvt_pk_bf16_f32 v%d, v%d, v%d" % (dst + (b + i) // 2, T + i, T + i + 1))

def barrier():
    e("s_barrier")

def write_flag(offs_sreg_expr_lines, stage, tag):
    for l in offs_sreg_expr_lines: e(l)
    e("s_or_b32 s%d, s%d, %d" % (sT1, sNonce, stage))
    e("v_mov_b32 v%d, s%d" % (TMP + 28, sT1))
    e("v_mov_b32 v%d, s%d" % (TMP + 29, sNonce + 1))
    e("v_mov_b32 v%d, 0" % (TMP + 27))
    e("s_mov_b64 exec, 1")
    g.vm("buffer_store_dwordx2 v[%d:%d], v%d, s[%d:%d], s%d offen sc0 sc1" % (TMP + 28, TMP + 29, TMP + 27, SRD_WS, SRD_WS + 3, sT0), tag)
    e("s_mov_b64 exec, -1")

def poll_issue(soff):
    g.vm("buffer_load_dwordx2 v[%d:%d], v%d, s[%d:%d], s%d offen sc1" % (TMP + 24, TMP + 25, vFl, SRD_WS, SRD_WS + 3, soff), "poll")

def poll_check(soff, stage, mask, first_wait=True):
    again = g.newlab("L_poll"); ok = g.newlab("L_pok"); chk = g.newlab("L_pchk")
    e("s_mov_b32 s%d, %d" % (sCnt, cfg.spin_limit))
    if mask is not None:
        e("s_mov_b32 s%d, %d" % (sMask, mask))
    if first_wait:
        g.wait("poll")
    else:
        e("s_waitcnt vmcnt(0)")
    e("s_branch %s" % chk)
    g.lab(again)
    e("s_sleep 1")
    e("buffer_load_dwordx2 v[%d:%d], v%d, s[%d:%d], s%d offen sc1" % (TMP + 24, TMP + 25, vFl, SRD_WS, SRD_WS + 3, soff))
    e("s_waitcnt vmcnt(0)")
    g.lab(chk)
    e("v_xor_b32 v%d, s%d, v%d" % (TMP + 24, sNonce, TMP + 24))
    e("v_xor_b32 v%d, s%d, v%d" % (TMP + 25, sNonce + 1, TMP + 25))
    st = str(stage) if isinstance(stage, int) else stage
    e("v_cmp_le_u32 vcc, %s, v%d" % (st, TMP + 24))
    e("v_cmp_ge_u32 s[%d:%d], 3, v%d" % (sT2, sT3, TMP + 24))
    e("s_and_b32 vcc_lo, vcc_lo, s%d" % sT2)
    e("v_cmp_eq_u32 s[%d:%d], 0, v%d" % (sT2, sT3, TMP + 25))
    e("s_and_b32 vcc_lo, vcc_lo, s%d" % sT2)
    e("s_and_b32 s%d, vcc_lo, s%d" % (sT2, sMask))
    e("s_cmp_eq_u32 s%d, s%d" % (sT2, sMask))
    e("s_cbranch_scc1 %s" % ok)
    e("s_sub_u32 s%d, s%d, 1" % (sCnt, sCnt))
    e("s_cmp_lg_u32 s%d, 0" % sCnt)
    e("s_cbranch_scc1 %s" % again)
    g.lab(ok)

def nonce_issue():
    e("v_mov_b32 v%d, 0" % (TMP + 26))
    g.vm("global_load_dwordx2 v[%d:%d], v%d, s[%d:%d] sc1" % (vNon, vNon + 1, TMP + 26, sDBG, sDBG + 1), "nonce")

def nonce_get():
    again = g.newlab("L_non"); ok = g.newlab("L_nok"); chk = g.newlab("L_nchk")
    e("s_mov_b32 s%d, %d" % (sCnt, cfg.spin_limit))
    e("s_branch %s" % chk)
    g.lab(again)
    e("s_sleep 1")
    e("v_mov_b32 v%d, 0" % (TMP + 26))
    e("global_load_dwordx2 v[%d:%d], v%d, s[%d:%d] sc1" % (vNon, vNon + 1, TMP + 26, sDBG, sDBG + 1))
    e("s_waitcnt vmcnt(0)")
    g.lab(chk)
    e("v_readfirstlane_b32 s%d, v%d" % (sNonce, vNon))
    e("v_readfirstlane_b32 s%d, v%d" % (sNonce + 1, vNon + 1))
    e("s_nop 3")
    e("s_cmp_lg_u32 s%d, 0" % (sNonce + 1))
    e("s_cbranch_scc1 %s" % ok)
    e("s_sub_u32 s%d, s%d, 1" % (sCnt, sCnt))
    e("s_cmp_lg_u32 s%d, 0" % sCnt)
    e("s_cbranch_scc1 %s" % again)
    g.lab(ok)

def p2_chunk_id(n):
    if n < 4:
        base, cnt, kind = 0, 8, 0
    elif n < 8:
        base, cnt, kind = 4, 8, 1
    else:
        base, cnt, kind = 8, 12, 2
    e("s_add_u32 s%d, s%d, %d" % (sT2, sP2, 2 * (n - base)))
    if cnt == 8:
        e("s_and_b32 s%d, s%d, 7" % (sT2, sT2))
        e("s_lshr_b32 s%d, s%d, 1" % (sT3, sT2))
        e("s_and_b32 s%d, s%d, 1" % (sT2, sT2))
        e("s_lshl_b32 s%d, s%d, 2" % (sT2, sT2))
        e("s_mul_i32 s%d, s%d, 7" % (sT3, sT3))
        e("s_add_u32 s%d, s%d, s%d" % (sT2, sT2, sT3))
        if kind: e("s_add_u32 s%d, s%d, 1" % (sT2, sT2))
    else:
        for _ in range(2):
            e("s_cmp_ge_u32 s%d, 12" % sT2)
            e("s_cselect_b32 s%d, 12, 0" % sT3)
            e("s_sub_u32 s%d, s%d, s%d" % (sT2, sT2, sT3))
        e("s_mul_i32 s%d, s%d, 43" % (sT3, sT2))
        e("s_lshr_b32 s%d, s%d, 7" % (sT3, sT3))
        e("s_mul_i32 s%d, s%d, 3" % (sT4, sT3))
        e("s_sub_u32 s%d, s%d, s%d" % (sT2, sT2, sT4))
        e("s_cmp_eq_u32 s%d, 2" % sT2)
        e("s_cselect_b32 s%d, 4, s%d" % (sT2, sT2))
        e("s_mul_i32 s%d, s%d, 7" % (sT3, sT3))
        e("s_add_u32 s%d, s%d, s%d" % (sT2, sT2, sT3))
        e("s_add_u32 s%d, s%d, 2" % (sT2, sT2))

def p2_issue_A(n):
    if n < 14:
        p2_chunk_id(n)
        e("s_lshl_b32 s%d, s%d, 12" % (sT0, sT2))
        e("s_add_u32 s%d, s%d, %d" % (sT0, sT0, 32 * 1024))
    else:
        e("s_add_u32 s%d, s%d, %d" % (sT2, sP2, 2 * (n - 14)))
        e("s_and_b32 s%d, s%d, 7" % (sT2, sT2))
        e("s_lshl_b32 s%d, s%d, 12" % (sT0, sT2))
    e("s_add_u32 s%d, s%d, s%d" % (sT0, sT0, sActBase))
    e("s_lshl_b32 s%d, s%d, 12" % (sT1, sW8))
    for i in range(4):
        dma(SRD_WS, vL16, "s%d" % sT0, "s_add_u32 m0, s%d, %d" % (sT1, (n % 3) * 16384), "A%d" % n, imm=i * 1024, sc="sc1", setm0=(i == 0))

def p2_issue_W(n):
    slot = (2 + n) % 6
    if n < 14:
        p2_chunk_id(n)
        e("s_mul_i32 s%d, s%d, %d" % (sT0, sT2, 64 * 896))
        e("s_add_u32 s%d, s%d, s%d" % (sT0, sT0, sWbase))
        srd = SRD_W2
    else:
        e("s_add_u32 s%d, s%d, %d" % (sT2, sP2, 2 * (n - 14)))
        e("s_and_b32 s%d, s%d, 7" % (sT2, sT2))
        e("s_mul_i32 s%d, s%d, %d" % (sT0, sT2, 56 * 896))
        e("s_add_u32 s%d, s%d, s%d" % (sT0, sT0, sSbase))
        srd = SRD_WO
    e("s_lshl_b32 s%d, s%d, 12" % (sT1, sW8))
    for i in range(4):
        dma(srd, vW2d + i, "s%d" % sT0, "s_add_u32 m0, s%d, %d" % (sT1, W2RING + slot * 16384), "W%d" % n, imm=i * 1024, setm0=(i == 0))

def p2_producer_setup():
    e("s_sub_u32 s%d, s%d, 4" % (sW8, sWave))
    e("s_lshr_b32 s%d, s%d, 1" % (sHalf, sW8))
    e("s_and_b32 s%d, s%d, 1" % (sT0, sW8))
    e("s_lshl_b32 s%d, s%d, 1" % (sP2, sRotA))
    e("s_add_u32 s%d, s%d, s%d" % (sP2, sP2, sHalf))
    e("s_lshl_b32 s%d, s%d, 7" % (sT1, sCB))
    e("s_mul_i32 s%d, s%d, %d" % (sT2, sT0, 32 * 896))
    e("s_add_u32 s%d, s%d, s%d" % (sWbase, sT1, sT2))
    e("s_mul_i32 s%d, s%d, %d" % (sT2, sT0, 28 * 896))
    e("s_add_u32 s%d, s%d, s%d" % (sSbase, sT1, sT2))
    e("v_lshrrev_b32 v%d, 3, v%d" % (TMP, vLane))
    e("v_mul_u32_u24 v%d, 896, v%d" % (TMP, TMP))
    e("v_bfe_u32 v%d, v%d, 4, 1" % (TMP + 1, vLane))
    e("v_lshlrev_b32 v%d, 2, v%d" % (TMP + 1, TMP + 1))
    e("v_and_b32 v%d, 7, v%d" % (TMP + 2, vLane))
    e("v_xor_b32 v%d, v%d, v%d" % (TMP + 1, TMP + 1, TMP + 2))
    e("v_lshl_add_u32 v%d, v%d, 4, v%d" % (vW2d, TMP + 1, TMP))
    for i in range(1, 4):
        e("v_add_u32 v%d, %d, v%d" % (vW2d + i, i * (8 * 896 - 1024), vW2d))

def p2_act_base_producer():
    e("s_and_b32 s%d, s%d, 1" % (sT0, sW8))
    e("s_lshl_b32 s%d, s%d, 1" % (sT1, sTB))
    e("s_add_u32 s%d, s%d, s%d" % (sT0, sT0, sT1))
    e("s_mul_i32 s%d, s%d, %d" % (sActBase, sT0, TG_STRIDE))

def fr_off(dst, rbreg):
    e("s_lshl_b32 s%d, s%d, 7" % (dst, rbreg))
    e("s_add_u32 s%d, s%d, %d" % (dst, dst, WS_FR))

def own_fr_lines():
    return ["s_lshl_b32 s%d, s%d, 7" % (sT0, sRB),
            "s_lshl_b32 s%d, s%d, 3" % (sT1, sRole),
            "s_add_u32 s%d, s%d, s%d" % (sT0, sT0, sT1),
            "s_add_u32 s%d, s%d, %d" % (sT0, sT0, WS_FR)]
def own_fh_lines():
    return ["s_lshl_b32 s%d, s%d, 7" % (sT0, sJ),
            "s_lshl_b32 s%d, s%d, 3" % (sT1, sRB),
            "s_add_u32 s%d, s%d, s%d" % (sT0, sT0, sT1),
            "s_add_u32 s%d, s%d, %d" % (sT0, sT0, WS_FH)]

def only_wave(w, fn):
    skip = g.newlab("L_skip")
    e("s_cmp_lg_u32 s%d, %d" % (sWave, w))
    e("s_cbranch_scc1 %s" % skip)
    saved = list(g.q)
    fn()
    g.q = saved if len(g.q) >= len(saved) else g.q
    g.lab(skip)

def prologue(att):
    rbcol = 896 if att else 128
    for u in range(3):
        issue_x(u); issue_w(u, RA, 0, "w%d" % u)
    issue_w(3, RA, 0, "w3")
    issue_w(0, RB, rbcol, "rb")
    if not att:
        bias_mfma_pending = True
    for u in range(7):
        if u == 0 and not att:
            g.wait(["x0", "w0", "bias"])
        else:
            g.wait(["x%d" % u, "w%d" % u])
        if u == 4:
            nonce_get()
            if att:
                only_wave(1, lambda: (g.wait("zero") if "zero" in g.q else None, write_flag(own_fh_lines(), 1, "flag")))
        barrier()
        g.stamp(1) if u == 0 else None
        if u >= 1 and u + 2 <= 6: issue_x(u + 2)
        if u + 4 <= 6: issue_w(u + 4, RA, 0, "w%d" % (u + 4))
        if u + 1 <= 6: issue_w(u + 1, RB, rbcol, "rb")
        if u == 1: nonce_issue()
        for s in range(4):
            e("ds_read_b128 a[%d:%d], v%d offset:%d" % (16 * u + 4 * s, 16 * u + 4 * s + 3, vXr + s, (u % 3) * 16384))
        for s in range(4):
            w = WF + 4 * s
            e("ds_read_b64_tr_b16 v[%d:%d], v%d offset:%d" % (w, w + 1, vTrA, (64 * u + 16 * s) * 128))
            e("ds_read_b64_tr_b16 v[%d:%d], v%d offset:%d" % (w + 2, w + 3, vTrA, (64 * u + 16 * s + 4) * 128))
        if u == 0 and not att:
            bias_mfma(ACC0, 0)
        for s in range(4):
            e("s_waitcnt lgkmcnt(%d)" % (6 - 2 * s))
            mfma(ACC0, WF + 4 * s, 16 * u + 4 * s, att, first_c=("0" if (att and u == 0 and s == 0) else None))
    g.wait("rb")
    barrier()
    g.stamp(2)

def build():
    K = NAME + "_kernel"
    e("s_cmp_ge_u32 s2, 256")
    e("s_cbranch_scc1 L_end")
    e("s_load_dwordx16 s[4:19], s[0:1], 0")
    e("s_load_dwordx4 s[20:23], s[0:1], 64")
    e("s_load_dwordx2 s[24:25], s[0:1], 80")
    if cfg.stamps:
        e("s_memrealtime s[98:99]")
        g.stamp(0)
    e("s_memrealtime s[%d:%d]" % (sNonce, sNonce + 1))
    e("v_lshrrev_b32 v%d, 6, v0" % TMP)
    e("v_and_b32 v%d, 63, v0" % vLane)
    e("v_readfirstlane_b32 s%d, v%d" % (sWave, TMP))
    e("s_and_b32 s%d, s2, 7" % sT0)
    e("s_lshr_b32 s%d, s2, 3" % sSlot)
    e("s_and_b32 s%d, s%d, 1" % (sT1, sT0))
    e("s_lshl_b32 s%d, s%d, 3" % (sT1, sT1))
    e("s_and_b32 s%d, s%d, 7" % (sT2, sSlot))
    e("s_add_u32 s%d, s%d, s%d" % (sRB, sT1, sT2))
    e("s_lshr_b32 s%d, s%d, 3" % (sT3, sSlot))
    e("s_and_b32 s%d, s%d, 6" % (sT1, sT0))
    e("s_and_b32 s%d, s%d, 1" % (sT4, sT3))
    e("s_cmp_eq_u32 s%d, 6" % sT1)
    e("s_cselect_b32 s%d, 1, 0" % sT5)
    e("s_cmp_ge_u32 s%d, 2" % sT3)
    e("s_cselect_b32 s%d, s%d, 0" % (sT5, sT5))
    e("s_xor_b32 s%d, s%d, s%d" % (sT4, sT4, sT5))
    e("s_add_u32 s%d, s%d, s%d" % (sJ, sT1, sT4))
    e("s_cmp_ge_u32 s%d, 2" % sT3)
    e("s_cselect_b32 s%d, 0, 8" % sT5)
    e("s_add_u32 s%d, s%d, s%d" % (sRole, sJ, sT5))
    e("s_lshl_b32 s%d, s%d, 1" % (sT4, sT3))
    e("s_add_u32 s%d, s%d, s%d" % (sRot, sT2, sT4))
    e("s_cmp_ge_u32 s%d, 7" % sRot)
    e("s_cselect_b32 s%d, 7, 0" % sT5)
    e("s_sub_u32 s%d, s%d, s%d" % (sRot, sRot, sT5))
    e("s_mul_i32 s%d, s%d, 37" % (sT4, sSlot))
    e("s_lshr_b32 s%d, s%d, 8" % (sT4, sT4))
    e("s_mul_i32 s%d, s%d, 7" % (sT5, sT4))
    e("s_sub_u32 s%d, s%d, s%d" % (sCB, sSlot, sT5))
    e("s_lshl_b32 s%d, s%d, 2" % (sTB, sT0))
    e("s_add_u32 s%d, s%d, s%d" % (sTB, sTB, sT4))
    e("s_lshr_b32 s%d, s%d, 1" % (sRB2, sTB))
    e("s_add_u32 s%d, s%d, s%d" % (sRotA, sCB, sT4))
    e("s_and_b32 s%d, s%d, 3" % (sTG, sWave))
    e("s_mov_b32 s%d, 0x3fb8aa3b" % sLog2e)
    e("s_mov_b32 s%d, 0x358637bd" % sEps)
    T = TMP
    e("v_lshrrev_b32 v%d, 3, v%d" % (T, vLane))
    e("v_and_b32 v%d, 7, v%d" % (T + 1, vLane))
    e("v_lshrrev_b32 v%d, 4, v%d" % (T + 2, vLane))
    e("v_lshlrev_b32 v%d, 4, v%d" % (vL16, vLane))
    e("v_mul_u32_u24 v%d, 896, v%d" % (T + 3, T))
    e("v_xor_b32 v%d, v%d, v%d" % (T + 4, T + 1, T + 2))
    e("v_lshl_add_u32 v%d, v%d, 4, v%d" % (vXd0, T + 4, T + 3))
    e("v_xor_b32 v%d, 4, v%d" % (T + 4, T + 4))
    e("v_lshl_add_u32 v%d, v%d, 4, v%d" % (vXd1, T + 4, T + 3))
    e("v_add_u32 v%d, %d, v%d" % (vXd1, 8 * 896 - 1024, vXd1))
    e("v_and_b32 v%d, 1, v%d" % (T + 5, T + 2))
    e("v_lshlrev_b32 v%d, 2, v%d" % (T + 5, T + 5))
    e("v_xor_b32 v%d, v%d, v%d" % (T + 5, T + 5, T + 1))
    e("v_and_b32 v%d, 31, v%d" % (T + 6, vLane))
    e("v_lshrrev_b32 v%d, 5, v%d" % (T + 7, vLane))
    e("v_bfe_u32 v%d, v%d, 1, 3" % (T + 8, vLane))
    e("v_xor_b32 v%d, v%d, v%d" % (T + 8, T + 8, T + 7))
    e("v_lshlrev_b32 v%d, 4, v%d" % (T + 8, T + 8))
    e("v_lshl_add_u32 v%d, v%d, 7, v%d" % (T + 8, T + 6, T + 8))
    e("s_lshl_b32 s%d, s%d, 12" % (sT4, sTG))
    e("s_add_u32 s%d, s%d, %d" % (sT4, sT4, XB))
    for s in range(4):
        e("v_xor_b32 v%d, %d, v%d" % (vXr + s, s << 5, T + 8))
        e("v_add_u32 v%d, s%d, v%d" % (vXr + s, sT4, vXr + s))
    e("v_bfe_u32 v%d, v%d, 2, 2" % (T + 9, vLane))
    e("v_and_b32 v%d, 3, v%d" % (T + 10, vLane))
    e("v_bfe_u32 v%d, v%d, 4, 1" % (T + 11, vLane))
    e("v_lshl_add_u32 v%d, v%d, 2, v%d" % (T + 12, T + 11, T + 10))
    e("v_lshl_add_u32 v%d, v%d, 3, v%d" % (T + 13, T + 7, T + 9))
    e("v_and_b32 v%d, 15, v%d" % (vFl, vLane))
    e("v_lshlrev_b32 v%d, 3, v%d" % (vFl, vFl))
    e("s_lshr_b32 s%d, s%d, 2" % (sHalf, sWave))
    e("s_waitcnt lgkmcnt(0)")
    def srd(d, p, n):
        e("s_mov_b32 s%d, s%d" % (d, p)); e("s_mov_b32 s%d, s%d" % (d + 1, p + 1))
        e("s_mov_b32 s%d, %d" % (d + 2, n)); e("s_mov_b32 s%d, 0x20000" % (d + 3))
    srd(SRD_X, sX, 2048 * 896); srd(SRD_W2, sW2, 1792 * 896); srd(SRD_WO, sWO, 448 * 896)
    srd(SRD_WS, sWS, WS_BYTES); srd(SRD_OUT, sOUT, 2048 * 896)
    e("s_lshl_b64 s[%d:%d], s[%d:%d], 2" % (sNonce, sNonce + 1, sNonce, sNonce + 1))
    e("s_or_b32 s%d, s%d, 0x40000000" % (sNonce + 1, sNonce + 1))
    e("s_or_b32 s%d, s2, s%d" % (sT4, sWave))
    e("s_cmp_lg_u32 s%d, 0" % sT4)
    e("s_cbranch_scc1 L_nopub")
    e("v_mov_b32 v%d, s%d" % (T + 20, sNonce))
    e("v_mov_b32 v%d, s%d" % (T + 21, sNonce + 1))
    e("v_mov_b32 v%d, 0" % (T + 22))
    e("s_mov_b64 exec, 1")
    e("global_store_dwordx2 v%d, v[%d:%d], s[%d:%d] sc0 sc1" % (T + 22, T + 20, T + 21, sDBG, sDBG + 1))
    e("s_mov_b64 exec, -1")
    g.lab("L_nopub")
    e("s_lshl_b32 s%d, s%d, 3" % (sT4, sRB))
    e("s_add_u32 s%d, s%d, s%d" % (sT4, sT4, sWave))
    e("s_mul_i32 s%d, s%d, %d" % (sXbase, sT4, 16 * 896))
    e("s_lshl_b32 s%d, s%d, 2" % (sT4, sRB))
    e("s_add_u32 s%d, s%d, s%d" % (sT4, sT4, sTG))
    e("s_mul_i32 s%d, s%d, %d" % (sActBase, sT4, TG_STRIDE))
    e("s_cmp_lt_u32 s%d, 8" % sRole)
    e("s_cbranch_scc1 L_att")

    srd(SRD_W, sW1, 448 * 3584)
    e("s_mov_b32 s%d, %d" % (sWstep, 64 * 3584))
    e("s_mul_i32 s%d, s%d, 448" % (sT4, sJ))
    e("s_and_b32 s%d, s%d, 1" % (sT5, sJ))
    e("s_lshl_b32 s%d, s%d, 6" % (sT0, sT5))
    e("s_add_u32 s%d, s%d, s%d" % (sWbase, sT4, sT0))
    e("s_cmp_eq_u32 s%d, 0" % sT5)
    e("s_cselect_b32 s%d, 384, 0" % sT0)
    e("s_add_u32 s%d, s%d, s%d" % (sSbase, sT4, sT0))
    e("s_lshr_b32 s%d, s%d, 6" % (sTile0, sWbase))
    e("s_add_u32 s%d, s%d, s%d" % (sTile0, sTile0, sHalf))
    e("s_lshr_b32 s%d, s%d, 6" % (sStage, sSbase))
    e("s_mov_b32 s%d, s%d" % (sT0, sB1));
    srd(100 - 0 - 4 + 4 - 4, sB1, 3584) if False else None
    e("s_mov_b32 s%d, s%d" % (SRD_OUT, sB1)); e("s_mov_b32 s%d, s%d" % (SRD_OUT + 1, sB1 + 1)); e("s_mov_b32 s%d, 3584" % (SRD_OUT + 2))
    e("v_lshlrev_b32 v%d, 1, v%d" % (T + 14, T + 6))
    e("v_lshl_add_u32 v%d, v%d, 12, v%d" % (T + 14, T + 7, T + 14))
    for p in range(3):
        e("s_add_u32 s%d, s%d, %d" % (sT0, sTile0, 2 * p))
        e("s_lshl_b32 s%d, s%d, 6" % (sT0, sT0))
        g.vm("buffer_load_ushort v%d, v%d, s[%d:%d], s%d offen" % (vBias + p, T + 14, SRD_OUT, SRD_OUT + 3, sT0), "bias")
    e("s_lshl_b32 s%d, s%d, 6" % (sT0, sStage))
    g.vm("buffer_load_ushort v%d, v%d, s[%d:%d], s%d offen" % (vBias + 3, T + 14, SRD_OUT, SRD_OUT + 3, sT0), "bias")
    e("s_mul_i32 s%d, s%d, %d" % (sT0, sWave, 8 * 3584))
    e("s_add_u32 s%d, s%d, s%d" % (sWbase, sWbase, sT0))
    e("s_add_u32 s%d, s%d, s%d" % (sSbase, sSbase, sT0))
    e("v_mul_u32_u24 v%d, 3584, v%d" % (T + 3, T))
    e("v_lshl_add_u32 v%d, v%d, 4, v%d" % (vWd, T + 5, T + 3))
    e("v_lshrrev_b32 v%d, 2, v%d" % (T + 3, vLane))
    e("v_mul_u32_u24 v%d, 3584, v%d" % (T + 3, T + 3))
    e("v_lshl_add_u32 v%d, v%d, 4, v%d" % (vSd, T + 10, T + 3))
    e("s_lshl_b32 s%d, s%d, 3" % (sT0, sHalf))
    tr_addr(T)
    e("v_lshlrev_b32 v%d, 6, v%d" % (vTrS, T + 13))
    e("v_lshl_add_u32 v%d, v%d, 3, v%d" % (vTrS, T + 12, vTrS))
    e("v_add_u32 v%d, %d, v%d" % (vTrS, SB, vTrS))
    for i in range(1, 4):
        e("v_mov_b32 v%d, 0" % (vBT + i)); e("v_mov_b32 v%d, 0" % (vOne + i))
    e("v_mov_b32 v%d, 0x3f80" % vOne)
    e("s_lshl_b32 s%d, s%d, 11" % (sTile0, sTile0))
    e("s_add_u32 s%d, s%d, s%d" % (sTile0, sTile0, sActBase))
    e("s_lshl_b32 s%d, s%d, 11" % (sStage, sStage))
    e("s_add_u32 s%d, s%d, s%d" % (sStage, sStage, sActBase))
    prologue(False)
    e("s_mov_b32 s%d, s%d" % (SRD_OUT, sOUT)); e("s_mov_b32 s%d, s%d" % (SRD_OUT + 1, sOUT + 1)); e("s_mov_b32 s%d, %d" % (SRD_OUT + 2, 2048 * 896))
    for u in range(7): issue_w(u, RA, 256, "p2")
    issue_s()
    q0 = list(g.q)
    e("s_cmp_lg_u32 s%d, 0" % sHalf)
    e("s_cbranch_scc1 L_ffnB")
    tl = lambda p: ("s%d" % sTile0, 32 * 1024 + p * 4096)
    tile_body(ACC1, vTrB, 128, False, bias=1)
    barrier(); g.stamp(3)
    epi_mish(ACC0, tl(0), "st0")
    g.wait("p2"); barrier(); g.stamp(4)
    tile_body(ACC0, vTrA, 128, False, bias=2)
    g.wait("st0"); barrier(); g.stamp(5)
    only_wave(0, lambda: write_flag(own_fr_lines(), 1, "flag"))
    epi_mish(ACC1, tl(1), "st1")
    g.wait("S") if "S" in g.q else None
    barrier(); g.stamp(6)
    tile_body(ACC1, vTrS, 64, False, bias=3)
    g.wait("st1"); barrier(); g.stamp(7)
    only_wave(0, lambda: write_flag(own_fr_lines(), 2, "flag"))
    epi_mish(ACC0, tl(2), "st2")
    epi_mish(ACC1, ("s%d" % sStage, 32 * 1024), "st3")
    g.wait_all()
    e("s_branch L_cons")
    g.lab("L_ffnB"); g.q = list(q0)
    mfma_fence()
    epi_mish(ACC0, tl(0), "st0")
    barrier(); g.stamp(3)
    tile_body(ACC0, vTrB, 128, False, bias=1)
    g.wait("p2"); barrier(); g.stamp(4)
    mfma_fence()
    epi_mish(ACC0, tl(1), "st1")
    e("v_mov_b32 v%d, v%d" % (vGate, vBias + 2))
    p2_producer_setup()
    for n in range(4): p2_issue_W(n)
    g.wait("st0") if "st0" in g.q else None
    barrier(); g.stamp(5)
    e("v_mov_b32 v%d, v%d" % (vBT, vGate))
    e("s_nop 1")
    tile_body_pre(ACC0, vTrA, 128)
    g.wait("S") if "S" in g.q else None
    barrier(); g.stamp(6)
    fr_off(sSlot, sRB2)
    poll_issue(sSlot)
    mfma_fence()
    epi_mish(ACC0, tl(2), "st2")
    poll_check(sSlot, 1, 0xff00)
    p2_act_base_producer()
    for n in range(3): p2_issue_A(n)
    g.wait("st1") if "st1" in g.q else None
    barrier(); g.stamp(7)
    p2_issue_W(4); p2_issue_W(5)
    g.wait(["A0", "st2"])
    e("s_branch L_prod")

    g.lab("L_att"); g.q = []
    srd(SRD_W, sWQKV, 448 * 2688)
    e("s_mov_b32 s%d, %d" % (sWstep, 64 * 2688))
    e("s_mul_i32 s%d, s%d, 112" % (sWbase, sJ))
    e("s_mul_i32 s%d, s%d, %d" % (sT0, sWave, 8 * 2688))
    e("s_add_u32 s%d, s%d, s%d" % (sWbase, sWbase, sT0))
    e("s_add_u32 s%d, s%d, 896" % (sWbase, sWbase))
    e("v_min_u32 v%d, 6, v%d" % (T + 5, T + 5))
    e("v_mul_u32_u24 v%d, 2688, v%d" % (T + 3, T))
    e("v_lshl_add_u32 v%d, v%d, 4, v%d" % (vWd, T + 5, T + 3))
    e("s_mul_i32 s%d, s%d, 7" % (sT0, sHalf))
    tr_addr(T)
    for h in range(2):
        e("s_lshl_b32 s%d, s%d, 1" % (sT0, sTG))
        e("s_add_u32 s%d, s%d, %d" % (sT0, sT0, h))
        e("s_add_u32 s%d, s%d, s%d" % (sT0, sT0, sRot))
        e("s_cmp_ge_u32 s%d, 7" % sT0)
        e("s_cselect_b32 s%d, 7, 0" % sT1)
        e("s_sub_u32 s%d, s%d, s%d" % (sT0, sT0, sT1))
        e("s_lshl_b32 s%d, s%d, 7" % (sT0, sT0))
        e("s_min_u32 s%d, s%d, 768" % (sT0, sT0))
        e("v_lshl_add_u32 v%d, v%d, 1, s%d" % (T + 15, vLane, sT0))
        g.vm("global_load_ushort v%d, v%d, s[%d:%d]" % (vBias + h, T + 15, sGATE, sGATE + 1), "gate")
    def zero_kv():
        for i in range(4): e("v_mov_b32 v%d, 0" % (T + 16 + i))
        e("s_lshl_b32 s%d, s%d, 13" % (sT0, sJ))
        e("s_lshl_b32 s%d, s%d, 9" % (sT1, sRB))
        e("s_add_u32 s%d, s%d, s%d" % (sT0, sT0, sT1))
        e("s_add_u32 s%d, s%d, %d" % (sT0, sT0, WS_KV))
        e("s_mov_b32 exec_hi, 0")
        e("buffer_store_dwordx4 v[%d:%d], v%d, s[%d:%d], s%d offen sc0 sc1" % (T + 16, T + 19, vL16, SRD_WS, SRD_WS + 3, sT0))
        e("s_mov_b64 exec, -1")
    only_wave(1, zero_kv)
    e("v_cmp_eq_u32 vcc, 28, v%d" % (T + 6))
    e("v_mov_b32 v%d, 0x3f803f80" % (T + 16 + 4))
    e("s_nop 0")
    e("v_cndmask_b32 v%d, 0, v%d, vcc" % (vVpad, T + 16 + 4))
    prologue(True)
    for u in range(7): issue_w(u, RA, -896, "Q")
    q0 = list(g.q)
    PADM = (0xf << 28) | (0xf << 60)
    def kv_partial():
        for i in range(8):
            e("v_cvt_pk_bf16_f32 v%d, v%d, v%d" % (PV + i, ACC1 + 2 * i, ACC1 + 2 * i + 1))
        e("s_mov_b32 exec_lo, 0xf0000000"); e("s_mov_b32 exec_hi, 0xf0000000")
        for i in range(8):
            e("v_mov_b32 v%d, 0" % (PK + i)); e("v_mov_b32 v%d, v%d" % (PV + i, vVpad))
        e("s_mov_b64 exec, -1")
        e("s_nop 1")
        e("v_mfma_f32_32x32x16_bf16 v[%d:%d], v[%d:%d], v[%d:%d], 0" % (ACC0, ACC0 + 15, PK, PK + 3, PV, PV + 3))
        e("v_mfma_f32_32x32x16_bf16 v[%d:%d], v[%d:%d], v[%d:%d], v[%d:%d]" % (ACC0, ACC0 + 15, PK + 4, PK + 7, PV + 4, PV + 7, ACC0, ACC0 + 15))
        e("s_lshl_b32 s%d, s%d, 12" % (sT0, sWave))
        e("s_add_u32 s%d, s%d, %d" % (sT0, sT0, KVSCR))
        e("v_add_u32 v%d, s%d, v%d" % (TMP, sT0, vL16))
        mfma_fence()
        for qd in range(4):
            e("ds_write_b128 v%d, v[%d:%d] offset:%d" % (TMP, ACC0 + 4 * qd, ACC0 + 4 * qd + 3, qd * 1024))
    def kv_reduce(hd):
        e("s_lshl_b32 s%d, s%d, 10" % (sT0, sTG))
        e("s_add_u32 s%d, s%d, %d" % (sT0, sT0, KVSCR + hd * 16384))
        e("v_add_u32 v%d, s%d, v%d" % (TMP + 16, sT0, vL16))
        for p in range(4):
            e("ds_read_b128 v[%d:%d], v%d offset:%d" % (TMP + 4 * p, TMP + 4 * p + 3, TMP + 16, p * 4096))
        e("s_lshl_b32 s%d, s%d, 7" % (sSlot, sJ))
        e("s_add_u32 s%d, s%d, %d" % (sSlot, sSlot, WS_FH))
        poll_issue(sSlot)
        e("s_waitcnt lgkmcnt(0)")
        for i in range(4):
            e("v_add_f32 v%d, v%d, v%d" % (TMP + i, TMP + i, TMP + 4 + i))
            e("v_add_f32 v%d, v%d, v%d" % (TMP + 8 + i, TMP + 8 + i, TMP + 12 + i))
        for i in range(4):
            e("v_add_f32 v%d, v%d, v%d" % (TMP + i, TMP + i, TMP + 8 + i))
        poll_check(sSlot, 1, 0xffff)
        e("s_lshl_b32 s%d, s%d, 13" % (sT0, sJ))
        e("s_lshl_b32 s%d, s%d, 10" % (sT1, sTG))
        e("s_add_u32 s%d, s%d, s%d" % (sT0, sT0, sT1))
        e("s_add_u32 s%d, s%d, %d" % (sT0, sT0, WS_KV + hd * 4096))
        e("v_lshlrev_b32 v%d, 2, v%d" % (TMP + 17, vLane))
        for i in range(4):
            g.vm("buffer_atomic_add_f32 v%d, v%d, s[%d:%d], s%d offen offset:%d" % (TMP + i, TMP + 17, SRD_WS, SRD_WS + 3, sT0, i * 256), "atom")
    def pq_pads():
        e("s_mov_b32 exec_lo, 0")
        e("v_mov_b32 v%d, 0" % (PK + 6)); e("v_mov_b32 v%d, 0" % (PK + 7))
        e("s_mov_b64 exec, -1")
    def o_compute():
        e("s_lshl_b32 s%d, s%d, 12" % (sT0, sHalf if False else sStage))
        e("s_add_u32 s%d, s%d, %d" % (sT0, sT0, MISC))
        e("v_lshl_add_u32 v%d, v%d, 2, s%d" % (TMP + 16, vLane, sT0))
        for i in range(8):
            e("ds_read2st64_b32 v[%d:%d], v%d offset0:%d offset1:%d" % (TMP + 2 * i, TMP + 2 * i + 1, TMP + 16, 2 * i, 2 * i + 1))
        e("s_waitcnt lgkmcnt(0)")
        for i in range(8):
            e("v_cvt_pk_bf16_f32 v%d, v%d, v%d" % (PV + i, TMP + 2 * i, TMP + 2 * i + 1))
        e("s_nop 1")
        e("v_mfma_f32_32x32x16_bf16 v[%d:%d], v[%d:%d], v[%d:%d], 0" % (ACC0, ACC0 + 15, PV, PV + 3, PK, PK + 3))
        e("v_mfma_f32_32x32x16_bf16 v[%d:%d], v[%d:%d], v[%d:%d], v[%d:%d]" % (ACC0, ACC0 + 15, PV + 4, PV + 7, PK + 4, PK + 7, ACC0, ACC0 + 15))
        mfma_fence()
        e("v_mov_b32 v%d, v%d" % (TMP, ACC0 + 12))
        e("v_mov_b32 v%d, v%d" % (TMP + 1, ACC0 + 12))
        e("s_nop 1")
        e("v_permlane32_swap_b32 v%d, v%d" % (TMP, TMP + 1))
        e("s_nop 1")
        e("v_add_f32 v%d, s%d, v%d" % (TMP + 1, sEps, TMP + 1))
        e("v_rcp_f32 v%d, v%d" % (TMP + 1, TMP + 1))
        e("s_nop 0")
        for i in range(16):
            e("v_mul_f32 v%d, v%d, v%d" % (ACC0 + i, ACC0 + i, TMP + 1))
        for i in range(8):
            e("v_cvt_pk_bf16_f32 v%d, v%d, v%d" % (PK + i, ACC0 + 2 * i, ACC0 + 2 * i + 1))
        pq_pads()
        e("s_lshl_b32 s%d, s%d, 2" % (sT1, sRB))
        e("s_add_u32 s%d, s%d, s%d" % (sT1, sT1, sTG))
        e("s_mul_i32 s%d, s%d, %d" % (sT1, sT1, TG_STRIDE))
        e("s_lshl_b32 s%d, s%d, 1" % (sT0, sJ))
        e("s_add_u32 s%d, s%d, s%d" % (sT0, sT0, sStage))
        e("s_lshl_b32 s%d, s%d, 11" % (sT0, sT0))
        e("s_add_u32 s%d, s%d, s%d" % (sT0, sT0, sT1))
        g.vm("buffer_store_dwordx4 v[%d:%d], v%d, s[%d:%d], s%d offen sc0 sc1" % (PK, PK + 3, vL16, SRD_WS, SRD_WS + 3, sT0), "so")
        g.vm("buffer_store_dwordx4 v[%d:%d], v%d, s[%d:%d], s%d offen offset:1024 sc0 sc1" % (PK + 4, PK + 7, vL16, SRD_WS, SRD_WS + 3, sT0), "so")
    e("s_mov_b32 s%d, s%d" % (sStage, sHalf))
    e("s_cmp_lg_u32 s%d, 0" % sHalf)
    e("s_cbranch_scc1 L_attB")
    tile_body(ACC1, vTrB, 128, True)
    barrier(); g.stamp(3)
    epi_phi(ACC0, PK)
    kv_partial()
    g.wait("Q", lgkm=0); barrier(); g.stamp(4)
    tile_body(ACC0, vTrA, 128, False)
    barrier(); g.stamp(5)
    kv_reduce(1)
    epi_phi(ACC0, PK)
    pq_pads()
    g.wait("atom"); barrier(); g.stamp(6)
    only_wave(0, lambda: write_flag(own_fh_lines(), 2, "flag"))
    poll_issue(sSlot)
    poll_check(sSlot, 2, 0xffff, first_wait=False); g.q = []
    e("s_lshl_b32 s%d, s%d, 13" % (sT0, sJ))
    e("s_lshl_b32 s%d, s%d, 11" % (sT1, sTG))
    e("s_add_u32 s%d, s%d, s%d" % (sT0, sT0, sT1))
    e("s_add_u32 s%d, s%d, %d" % (sT0, sT0, WS_KV))
    dma(SRD_WS, vL16, "s%d" % sT0, "s_add_u32 m0, s%d, %d" % (sT1, MISC), "kvl", sc="sc1")
    dma(SRD_WS, vL16, "s%d" % sT0, None, "kvl", imm=1024, sc="sc1", setm0=False)
    g.wait_all(); barrier(); g.stamp(7)
    o_compute()
    g.wait_all()
    e("s_branch L_cons")
    g.lab("L_attB"); g.q = list(q0)
    mfma_fence()
    epi_phi(ACC0, PK)
    barrier(); g.stamp(3)
    tile_body(ACC1, vTrB, 128, True)
    g.wait("Q"); barrier(); g.stamp(4)
    mfma_fence()
    kv_partial()
    e("v_bfe_u32 v%d, v%d, 1, 1" % (TMP + 1, vLane))
    e("v_lshlrev_b32 v%d, 6, v%d" % (TMP + 1, TMP + 1))
    e("v_xor_b32 v%d, 0x70, v%d" % (TMP + 1, TMP + 1))
    e("v_lshl_add_u32 v%d, v%d, 7, v%d" % (TMP + 1, vLane, TMP + 1))
    e("s_lshl_b32 s%d, s%d, 14" % (sT0, sTG))
    e("v_add_u32 v%d, s%d, v%d" % (TMP + 1, sT0, TMP + 1))
    e("v_mov_b32 v%d, v%d" % (TMP + 2, vBias)); e("v_mov_b32 v%d, 0" % (TMP + 3))
    e("v_mov_b32 v%d, v%d" % (TMP + 4, vBias + 1)); e("v_mov_b32 v%d, 0" % (TMP + 5))
    e("ds_write_b64 v%d, v[%d:%d] offset:%d" % (TMP + 1, TMP + 2, TMP + 3, RA))
    sk = g.newlab("L_nog")
    e("s_cmp_eq_u32 s%d, 3" % sTG)
    e("s_cbranch_scc1 %s" % sk)
    e("ds_write_b64 v%d, v[%d:%d] offset:%d" % (TMP + 1, TMP + 4, TMP + 5, RA + 8192))
    g.lab(sk)
    kv_reduce(0)
    p2_producer_setup()
    sk = g.newlab("L_idle1")
    e("s_cmp_ge_u32 s2, 224"); e("s_cbranch_scc1 %s" % sk)
    sv = list(g.q)
    for n in range(4): p2_issue_W(n)
    g.q = sv
    g.lab(sk)
    e("s_waitcnt lgkmcnt(0)")
    barrier(); g.stamp(5)
    tile_body(ACC0, vTrA, 128, False)
    g.wait_all()
    barrier(); g.stamp(6)
    mfma_fence()
    sk = g.newlab("L_nog2")
    e("s_cmp_lg_u32 s%d, 0" % sJ); e("s_cbranch_scc1 %s" % sk)
    e("v_mul_f32 v%d, s%d, v%d" % (TMP, sLog2e, ACC0 + 12))
    e("v_exp_f32_e64 v%d, -v%d" % (TMP, TMP))
    e("s_nop 0")
    e("v_add_f32 v%d, 1.0, v%d" % (TMP, TMP))
    e("v_rcp_f32 v%d, v%d" % (TMP, TMP))
    e("v_lshlrev_b32 v%d, 2, v%d" % (TMP + 1, vLane))
    e("s_lshl_b32 s%d, s%d, 2" % (sT0, sRB))
    e("s_add_u32 s%d, s%d, s%d" % (sT0, sT0, sTG))
    e("s_lshl_b32 s%d, s%d, 7" % (sT0, sT0))
    e("s_add_u32 s%d, s%d, %d" % (sT0, sT0, WS_G - 128))
    e("s_mov_b32 exec_lo, 0")
    e("buffer_store_dword v%d, v%d, s[%d:%d], s%d offen sc0 sc1" % (TMP, TMP + 1, SRD_WS, SRD_WS + 3, sT0))
    e("s_mov_b64 exec, -1")
    g.lab(sk)
    epi_phi(ACC0, PK)
    pq_pads()
    sk = g.newlab("L_idle2")
    e("s_cmp_ge_u32 s2, 224"); e("s_cbranch_scc1 %s" % sk)
    fr_off(sSlot, sRB2)
    poll_issue(sSlot)
    poll_check(sSlot, 1, 0xff00, first_wait=False)
    p2_act_base_producer()
    for n in range(3): p2_issue_A(n)
    p2_issue_W(4); p2_issue_W(5)
    g.lab(sk)
    barrier(); g.stamp(7)
    o_compute()
    g.wait_all()
    e("s_branch L_prod")

    g.lab("L_prod")
    g.q = ["A1"] * 4 + ["A2"] * 4
    barrier(); g.stamp(8)
    e("s_cmp_ge_u32 s2, 224"); e("s_cbranch_scc1 L_fin")
    for n in range(1, 18):
        g.wait("A%d" % n)
        barrier()
        if n + 2 <= 17: p2_issue_A(n + 2)
        if n + 5 <= 17: p2_issue_W(n + 5)
    g.stamp(9)
    e("s_branch L_fin")

    g.lab("L_cons"); g.q = []
    barrier(); g.stamp(8)
    only_wave(0, lambda: write_flag(own_fr_lines(), 3, "flag"))
    e("s_cmp_ge_u32 s2, 224"); e("s_cbranch_scc1 L_fin")
    T = TMP
    vA, vW, vAr, vWr = T + 20, T + 21, T + 22, T + 23
    AF = 96 + 16
    e("s_and_b32 s%d, s%d, 1" % (sT0, sWave))
    e("s_lshr_b32 s%d, s%d, 1" % (sT1, sWave))
    e("s_lshl_b32 s%d, s%d, 12" % (sT2, sT1))
    e("v_add_u32 v%d, s%d, v%d" % (vAr, sT2, vL16))
    e("v_bfe_u32 v%d, v%d, 2, 2" % (T + 9, vLane))
    e("v_and_b32 v%d, 3, v%d" % (T + 10, vLane))
    e("v_bfe_u32 v%d, v%d, 4, 1" % (T + 11, vLane))
    e("v_lshrrev_b32 v%d, 5, v%d" % (T + 7, vLane))
    e("v_lshl_add_u32 v%d, v%d, 2, v%d" % (T + 12, T + 11, T + 10))
    e("v_lshl_add_u32 v%d, v%d, 2, v%d" % (T + 13, T + 7, T + 9))
    e("s_lshl_b32 s%d, s%d, 3" % (sT0, sT0))
    tr_addr(T, dst=vWr, second=False)
    e("s_mov_b32 s%d, 0" % sN)
    e("s_mov_b32 s%d, 0" % sAslot)
    e("s_mov_b32 s%d, %d" % (sWslot, W2RING + 2 * 16384))
    for i in range(16):
        e("v_mov_b32 v%d, 0" % (ACC0 + i)); e("v_mov_b32 v%d, 0" % (ACC1 + i))
    fr_off(sSlot, sRB2)
    def iteration(acc):
        e("v_add_u32 v%d, s%d, v%d" % (vA, sAslot, vAr))
        e("v_add_u32 v%d, s%d, v%d" % (vW, sWslot, vWr))
        def rd(s):
            w = WF + 4 * (s % 4); a = AF + 4 * (s % 4)
            off = (s // 4) * 8192
            e("ds_read_b64_tr_b16 v[%d:%d], v%d offset:%d" % (w, w + 1, vW, off + (16 * (s % 4)) * 128))
            e("ds_read_b64_tr_b16 v[%d:%d], v%d offset:%d" % (w + 2, w + 3, vW, off + (16 * (s % 4) + 8) * 128))
            e("ds_read_b128 v[%d:%d], v%d offset:%d" % (a, a + 3, vA, off + (s % 4) * 1024))
        D = 3
        for s in range(D): rd(s)
        for s in range(8):
            rem = min(7, s + D - 1) - s
            e("s_waitcnt lgkmcnt(%d)" % (3 * rem))
            w = WF + 4 * (s % 4); a = AF + 4 * (s % 4)
            e("v_mfma_f32_32x32x16_bf16 v[%d:%d], v[%d:%d], v[%d:%d], v[%d:%d]" % (acc, acc + 15, w, w + 3, a, a + 3, acc, acc + 15))
            if s + D < 8: rd(s + D)
        e("s_add_u32 s%d, s%d, 16384" % (sAslot, sAslot))
        e("s_cmp_eq_u32 s%d, %d" % (sAslot, 3 * 16384))
        e("s_cselect_b32 s%d, 0, s%d" % (sAslot, sAslot))
        e("s_add_u32 s%d, s%d, 16384" % (sWslot, sWslot))
        e("s_cmp_eq_u32 s%d, %d" % (sWslot, W2RING + 6 * 16384))
        e("s_cselect_b32 s%d, %d, s%d" % (sWslot, W2RING, sWslot))
        e("s_add_u32 s%d, s%d, 1" % (sN, sN))
    e("s_branch L_c1")
    g.lab("L_c0")
    e("s_cmp_lg_u32 s%d, 0" % sWave); e("s_cbranch_scc1 L_cbar")
    e("s_mov_b32 s%d, 0" % sStage)
    e("s_cmp_eq_u32 s%d, 2" % sN)
    e("s_cselect_b32 s%d, 2, s%d" % (sStage, sStage))
    e("s_cmp_eq_u32 s%d, 6" % sN)
    e("s_cselect_b32 s%d, 3, s%d" % (sStage, sStage))
    e("s_cmp_eq_u32 s%d, 12" % sN)
    e("s_cselect_b32 s%d, 3, s%d" % (sStage, sStage))
    e("s_cselect_b32 s%d, 0xff, 0xff00" % sMask) if False else None
    e("s_mov_b32 s%d, 0xff00" % sMask)
    e("s_cselect_b32 s%d, 0xff, s%d" % (sMask, sMask))
    e("s_cmp_eq_u32 s%d, 0" % sStage); e("s_cbranch_scc1 L_cbar")
    poll_issue(sSlot)
    poll_check(sSlot, "s%d" % sStage, None, first_wait=False)
    g.lab("L_cbar")
    barrier()
    g.lab("L_c1")
    iteration(ACC1)
    e("s_cmp_lt_u32 s%d, 14" % sN); e("s_cbranch_scc1 L_c0")
    e("v_and_b32 v%d, 31, v%d" % (T + 6, vLane))
    e("v_lshlrev_b32 v%d, 2, v%d" % (T + 18, T + 6))
    e("s_lshr_b32 s%d, s%d, 1" % (sT1, sWave))
    e("s_lshl_b32 s%d, s%d, 1" % (sT0, sTB))
    e("s_add_u32 s%d, s%d, s%d" % (sT0, sT0, sT1))
    e("s_lshl_b32 s%d, s%d, 7" % (sT2, sT0))
    e("s_add_u32 s%d, s%d, %d" % (sT2, sT2, WS_G))
    e("buffer_load_dword v%d, v%d, s[%d:%d], s%d offen sc1" % (T + 19, T + 18, SRD_WS, SRD_WS + 3, sT2))
    e("s_mul_i32 s%d, s%d, %d" % (sXbase, sT0, 32 * 896))
    e("s_lshl_b32 s%d, s%d, 7" % (sT2, sCB))
    e("s_add_u32 s%d, s%d, s%d" % (sXbase, sXbase, sT2))
    e("s_and_b32 s%d, s%d, 1" % (sT2, sWave))
    e("s_lshl_b32 s%d, s%d, 6" % (sT2, sT2))
    e("s_add_u32 s%d, s%d, s%d" % (sXbase, sXbase, sT2))
    e("v_mul_u32_u24 v%d, 896, v%d" % (T + 17, T + 6))
    e("v_lshl_add_u32 v%d, v%d, 4, v%d" % (T + 17, T + 7, T + 17))
    g.lab("L_c2")
    barrier()
    iteration(ACC0)
    e("s_cmp_lt_u32 s%d, 18" % sN); e("s_cbranch_scc1 L_c2")
    g.stamp(9)
    e("s_waitcnt vmcnt(0)")
    mfma_fence()
    for i in range(16):
        e("v_sub_f32 v%d, v%d, v%d" % (ACC0 + i, ACC0 + i, ACC1 + i))
    for i in range(16):
        e("v_fma_f32 v%d, v%d, v%d, v%d" % (ACC0 + i, ACC0 + i, T + 19, ACC1 + i))
    for i in range(8):
        e("v_cvt_pk_bf16_f32 v%d, v%d, v%d" % (WF + i, ACC0 + 2 * i, ACC0 + 2 * i + 1))
    e("s_nop 1")
    for qq in range(2):
        e("v_permlane32_swap_b32 v%d, v%d" % (WF + 4 * qq, WF + 4 * qq + 2))
        e("v_permlane32_swap_b32 v%d, v%d" % (WF + 4 * qq + 1, WF + 4 * qq + 3))
    e("s_nop 1")
    for qq in range(2):
        e("buffer_store_dwordx4 v[%d:%d], v%d, s[%d:%d], s%d offen offset:%d" % (WF + 4 * qq, WF + 4 * qq + 3, T + 17, SRD_OUT, SRD_OUT + 3, sXbase, qq * 32))
    g.lab("L_fin")
    if cfg.stamps:
        e("s_waitcnt vmcnt(0)")
        g.stamp(10)
        e("s_lshl_b32 s%d, s2, 3" % sT0)
        e("s_add_u32 s%d, s%d, s%d" % (sT0, sT0, sWave))
        e("s_lshl_b32 s%d, s%d, 6" % (sT0, sT0))
        e("s_add_u32 s%d, s%d, %d" % (sT1, sWS, WS_STAMP))
        e("s_addc_u32 s%d, s%d, 0" % (sT2, sWS + 1))
        e("s_mov_b32 s%d, s%d" % (sMask, sT1)); e("s_mov_b32 s%d, s%d" % (sMask + 1, sT2))
        e("v_mov_b32 v%d, s%d" % (TMP, sT0))
        e("v_mov_b32 v%d, s98" % (TMP + 2))
        e("v_accvgpr_write_b32 a127, v%d" % (TMP + 2))
        e("s_getreg_b32 s%d, hwreg(HW_REG_HW_ID)" % sT3)
        e("v_mov_b32 v%d, s%d" % (TMP + 2, sT3))
        e("v_accvgpr_write_b32 a126, v%d" % (TMP + 2))
        e("s_getreg_b32 s%d, hwreg(HW_REG_XCC_ID)" % sT3)
        e("v_mov_b32 v%d, s%d" % (TMP + 2, sT3))
        e("v_accvgpr_write_b32 a125, v%d" % (TMP + 2))
        e("s_memrealtime s[%d:%d]" % (sStamp, sStamp + 1))
        e("s_waitcnt lgkmcnt(0)")
        e("v_mov_b32 v%d, s%d" % (TMP + 2, sStamp))
        e("v_accvgpr_write_b32 a123, v%d" % (TMP + 2))
        e("v_mov_b32 v%d, s98" % (TMP + 2))
        e("v_accvgpr_write_b32 a124, v%d" % (TMP + 2))
        e("s_mov_b64 exec, 1")
        e("s_nop 1")
        for i in range(4):
            e("global_store_dwordx4 v%d, a[%d:%d], s[%d:%d] offset:%d" % (TMP, 112 + 4 * i, 115 + 4 * i, sMask, sMask + 1, 16 * i))
        if cfg.dbgwg >= 0:
            e("s_cmp_lg_u32 s2, %d" % cfg.dbgwg); e("s_cbranch_scc1 L_end")
            e("s_cmp_lg_u32 s%d, 0" % sWave); e("s_cbranch_scc1 L_end")
            e("v_mov_b32 v%d, 0" % TMP)
            for i in range(13):
                e("global_store_dword v%d, a%d, s[%d:%d] offset:%d" % (TMP, 112 + i, sDBG, sDBG + 1, 8 + 4 * i))
    g.lab("L_end")
    e("s_endpgm")

def tr_addr(T, dst=None, second=True):
    d = vTrA if dst is None else dst
    e("v_add_u32 v%d, s%d, v%d" % (T + 14, sT0, T + 12))
    e("v_lshrrev_b32 v%d, 1, v%d" % (T + 15, T + 14))
    e("v_and_b32 v%d, 2, v%d" % (T + 16, T + 9))
    e("v_lshlrev_b32 v%d, 1, v%d" % (T + 16, T + 16))
    e("v_xor_b32 v%d, v%d, v%d" % (T + 15, T + 15, T + 16))
    e("v_and_b32 v%d, 1, v%d" % (T + 14, T + 14))
    e("v_lshlrev_b32 v%d, 3, v%d" % (T + 14, T + 14))
    e("v_lshl_add_u32 v%d, v%d, 4, v%d" % (T + 14, T + 15, T + 14))
    e("v_lshl_add_u32 v%d, v%d, 7, v%d" % (d, T + 13, T + 14))
    if second:
        e("v_add_u32 v%d, %d, v%d" % (vTrB, RB, vTrA))

def tile_body_pre(acc, vtr, rowbytes, depth=3):
    def rd(s):
        w = WF + 4 * (s % 4)
        e("ds_read_b64_tr_b16 v[%d:%d], v%d offset:%d" % (w, w + 1, vtr, (16 * s) * rowbytes))
        e("ds_read_b64_tr_b16 v[%d:%d], v%d offset:%d" % (w + 2, w + 3, vtr, (16 * s + 4) * rowbytes))
    for s in range(depth): rd(s)
    e("v_mfma_f32_32x32x16_bf16 v[%d:%d], v[%d:%d], v[%d:%d], 0" % (acc, acc + 15, vBT, vBT + 3, vOne, vOne + 3))
    for s in range(28):
        rem = min(27, s + depth - 1) - s
        e("s_waitcnt lgkmcnt(%d)" % (2 * rem))
        mfma(acc, WF + 4 * (s % 4), 4 * s, False)
        if s + depth < 28: rd(s + depth)

def main():
    out = sys.argv[1]
    for a in sys.argv[2:]:
        k, v = a.split("=")
        setattr(cfg, k, int(v))
    build()
    K = NAME + "_kernel"
    hdr = "; gated mix: linear attention block + mish FFN, single persistent launch (generated by gen.py)\n"
    hdr += "; @launch grid=(256,1,1) block=(512,1,1) lds=%d\n" % LDS_BYTES
    hdr += '.amdgcn_target "amdgcn-amd-amdhsa--gfx950"\n.text\n.globl %s\n.p2align 8\n.type %s,@function\n%s:\n' % (K, K, K)
    nag = 128 if cfg.stamps else NAG
    ftr = '''.section .rodata,"a"
.p2align 6
.amdhsa_kernel %s
  .amdhsa_next_free_vgpr %d
  .amdhsa_next_free_sgpr 102
  .amdhsa_accum_offset %d
  .amdhsa_group_segment_fixed_size 0
  .amdhsa_kernarg_size 88
  .amdhsa_user_sgpr_count 2
  .amdhsa_user_sgpr_kernarg_segment_ptr 1
  .amdhsa_system_sgpr_workgroup_id_x 1
.end_amdhsa_kernel
''' % (K, NVG + nag, NVG)
    open(out, "w").write(hdr + "\n".join(g.L) + "\n" + ftr)
main()
```

```python
NAME = "gated_mix__linear_attn_block__dense_activation_mish__prompt"
def wrap(kernels, launches):
    s = ""
    if len(launches) == 1 and launches[0][0] == NAME + "_kernel":
        l = launches[0]
        s += "; @launch grid=(%d,1,1) block=(%d,1,1) lds=%d\n" % (l[1], l[2], l[3])
    else:
        for l in launches:
            s += "; @launch kernel=%s grid=(%d,1,1) block=(%d,1,1) lds=%d\n" % l
    s += '.amdgcn_target "amdgcn-amd-amdhsa--gfx950"\n.text\n'
    for (lab, body, vg, acc, sg) in kernels:
        s += ".globl %s\n.p2align 8\n.type %s,@function\n%s:\n%s\ns_endpgm\n" % (lab, lab, lab, body)
    s += '.section .rodata,"a"\n'
    for (lab, body, vg, acc, sg) in kernels:
        s += ".p2align 6\n.amdhsa_kernel %s\n  .amdhsa_next_free_vgpr %d\n  .amdhsa_next_free_sgpr %d\n  .amdhsa_accum_offset %d\n  .amdhsa_group_segment_fixed_size 0\n  .amdhsa_kernarg_size 88\n  .amdhsa_user_sgpr_count 2\n  .amdhsa_user_sgpr_kernarg_segment_ptr 1\n  .amdhsa_system_sgpr_workgroup_id_x 1\n.end_amdhsa_kernel\n" % (lab, vg, sg, acc)
    return s

K = NAME + "_kernel"
open("mb_empty1.s", "w").write(wrap([(K, "s_nop 0", 8, 8, 16)], [(K, 256, 512, 0)]))
open("mb_empty2.s", "w").write(wrap([("a_kernel", "s_nop 0", 8, 8, 16)], [("a_kernel", 256, 512, 0)] * 2))
open("mb_empty3.s", "w").write(wrap([("a_kernel", "s_nop 0", 8, 8, 16)], [("a_kernel", 256, 512, 0)] * 3))
open("mb_empty1_big.s", "w").write(wrap([(K, "s_nop 0", 256, 256, 100)], [(K, 256, 512, 160*1024)]))

def stamp_prolog():
    return """
  s_memrealtime s[60:61]
  s_memtime s[62:63]
"""
def stamp(i):
    return "  s_memtime s[%d:%d]\n" % (60 + 2 * i, 61 + 2 * i)
def stamp_epilog(n):
    s = """
  s_waitcnt lgkmcnt(0)
  v_cmp_eq_u32 vcc, 0, v0
  s_and_saveexec_b64 s[50:51], vcc
  s_cbranch_execz L_st_done
  s_load_dwordx2 s[52:53], s[0:1], 80
  s_waitcnt lgkmcnt(0)
  s_add_u32 s52, s52, 0x8000000
  s_addc_u32 s53, s53, 0
  s_mul_i32 s54, s2, %d
  v_mov_b32 v2, s54
""" % (n * 8)
    for i in range(n):
        s += "  v_mov_b32 v4, s%d\n  v_mov_b32 v5, s%d\n  global_store_dwordx2 v2, v[4:5], s[52:53] offset:%d\n  s_nop 1\n" % (60 + 2 * i, 61 + 2 * i, i * 8)
    s += "L_st_done:\n"
    return s

def dma_bw(nwaves, kb_per_pass, passes, depth, shared_groups, sc=""):
    per_wave = kb_per_pass // nwaves
    s = stamp_prolog()
    s += """
  s_load_dwordx2 s[4:5], s[0:1], 32
  s_load_dwordx2 s[6:7], s[0:1], 48
  v_lshrrev_b32 v1, 6, v0
  s_nop 0
  v_readfirstlane_b32 s20, v1
  v_and_b32 v2, 63, v0
  v_lshlrev_b32 v2, 4, v2
  s_waitcnt lgkmcnt(0)
  s_mov_b32 s8, s4
  s_mov_b32 s9, s5
  s_mov_b32 s10, 1605632
  s_mov_b32 s11, 0x20000
  s_lshr_b32 s21, s2, 3
  s_and_b32 s21, s21, %d
  s_mul_i32 s21, s21, %d
  s_mul_i32 s22, s20, %d
  s_add_u32 s21, s21, s22     ; global base
  s_mul_i32 s23, s20, %d      ; lds base
""" % (shared_groups - 1, kb_per_pass * 1024, per_wave * 1024, depth * 1024)
    for p in range(passes):
        s += "  s_mov_b32 s24, s21\n"
        for i in range(per_wave):
            s += "  s_add_u32 m0, s23, %d\n" % ((i % depth) * 1024)
            if i >= depth:
                s += "  s_waitcnt vmcnt(%d)\n" % (depth - 1)
            else:
                s += "  s_nop 0\n"
            s += "  buffer_load_dwordx4 v2, s[8:11], s24 offen %s lds\n" % sc
            s += "  s_add_u32 s24, s24, 1024\n"
            if i == 0 and p == 0:
                pass
        s += "  s_waitcnt vmcnt(0)\n  s_barrier\n"
        s += stamp(2 + p)
    s += stamp_epilog(2 + passes)
    return s

for nw in (4, 8):
    for depth in (8, 16):
        body = dma_bw(nw, 256, 3, depth, 4)
        open("mb_dma_w%d_d%d.s" % (nw, depth), "w").write(wrap([(K, body, 64, 64, 100)], [(K, 256, nw * 64, nw * depth * 1024)]))

def dma_cold(nwaves, kb, depth, groups, arr_off, arr_bytes, xcd_split=False):
    per_wave = kb // nwaves
    s = stamp_prolog()
    s += """
  s_load_dwordx2 s[4:5], s[0:1], %d
  v_lshrrev_b32 v1, 6, v0
  s_nop 0
  v_readfirstlane_b32 s20, v1
  v_and_b32 v2, 63, v0
  v_lshlrev_b32 v2, 4, v2
  s_waitcnt lgkmcnt(0)
""" % arr_off
    s += stamp(2)
    s += """
  s_mov_b32 s8, s4
  s_mov_b32 s9, s5
  s_mov_b32 s10, %d
  s_mov_b32 s11, 0x20000
  s_lshr_b32 s21, s2, %d
  s_and_b32 s21, s21, %d
  s_mul_i32 s21, s21, %d
  s_mul_i32 s22, s20, %d
  s_add_u32 s21, s21, s22     ; global base
  s_mul_i32 s23, s20, %d      ; lds base
""" % (arr_bytes, 0 if xcd_split else 3, groups - 1, kb * 1024, per_wave * 1024, depth * 1024)
    s += "  s_mov_b32 s24, s21\n"
    ns = 3
    for i in range(per_wave):
        s += "  s_add_u32 m0, s23, %d\n" % ((i % depth) * 1024)
        if i >= depth:
            s += "  s_waitcnt vmcnt(%d)\n" % (depth - 1)
            if i == depth or i == per_wave // 2 :
                s += stamp(ns); ns += 1
        else:
            s += "  s_nop 0\n"
        s += "  buffer_load_dwordx4 v2, s[8:11], s24 offen lds\n"
        s += "  s_add_u32 s24, s24, 1024\n"
    s += "  s_waitcnt vmcnt(0)\n"
    s += stamp(ns); ns += 1
    s += "  s_barrier\n"
    s += stamp(ns); ns += 1
    s += stamp_epilog(ns)
    return s, ns

for (tag, groups, off, nb, xs) in (("w1g4", 4, 32, 1605632, False), ("w1x4", 4, 32, 1605632, True)):
    body, ns = dma_cold(8, 256, 16, groups, off, nb, xs)
    open("mb_cold_%s.s" % tag, "w").write(wrap([(K, body, 64, 64, 100)], [(K, 256, 512, 8 * 16 * 1024)]))
    print(tag, ns)

def dma_rows(nwaves, ninst, depth, seg, stride, coloff_mul, passes=3, arr_off=32, arr_bytes=1605632, nslices=16):
    lanes_per_row = seg // 16
    rows_per_inst = 64 // lanes_per_row
    s = stamp_prolog()
    s += """
  s_load_dwordx2 s[4:5], s[0:1], %d
  v_lshrrev_b32 v1, 6, v0
  s_nop 0
  v_readfirstlane_b32 s20, v1
  v_and_b32 v2, 63, v0
  v_lshrrev_b32 v3, %d, v2        ; row
  v_and_b32 v2, %d, v2            ; chunk
  v_lshlrev_b32 v2, 4, v2
  s_movk_i32 s30, %d
  v_mul_lo_u32 v3, v3, s30
  v_add_u32 v2, v2, v3
  s_waitcnt lgkmcnt(0)
  s_mov_b32 s8, s4
  s_mov_b32 s9, s5
  s_mov_b32 s10, %d
  s_mov_b32 s11, 0x20000
  s_lshr_b32 s21, s2, 3
  s_and_b32 s21, s21, %d
  s_mul_i32 s21, s21, %d
  s_mul_i32 s23, s20, %d      ; lds base
""" % (arr_off, lanes_per_row.bit_length() - 1, lanes_per_row - 1, stride, arr_bytes, nslices - 1, coloff_mul, depth * 1024)
    for p in range(passes):
        for i in range(ninst // nwaves):
            s += "  s_add_u32 m0, s23, %d\n" % ((i % depth) * 1024)
            s += "  s_mul_i32 s24, s20, %d\n" % (rows_per_inst * stride)
            r0 = (i * nwaves * rows_per_inst)
            blk = r0 // 448; r0 = r0 % 448
            s += "  s_add_u32 s24, s24, %d\n" % (r0 * stride + blk * seg)
            s += "  s_add_u32 s24, s24, s21\n"
            if i >= depth:
                s += "  s_waitcnt vmcnt(%d)\n" % (depth - 1)
            s += "  buffer_load_dwordx4 v2, s[8:11], s24 offen lds\n"
        s += "  s_waitcnt vmcnt(0)\n  s_barrier\n"
        s += stamp(2 + p)
    s += stamp_epilog(2 + passes)
    return s

for (tag, seg, mul) in (("s64a", 64, 448), ("s64u", 64, 456), ("s128a", 128, 256*2), ("s256a", 256, 256), ("s128u", 128, 456), ("s64a128", 64, 512)):
    ninst = 224
    body = dma_rows(4, ninst, 16, seg, 3584, mul, nslices=4)
    open("mb_rows_%s.s" % tag, "w").write(wrap([(K, body, 64, 64, 100)], [(K, 256, 256, 4 * 16 * 1024)]))

def xfrag(nwaves, dup, passes=3, lds=False):
    s = stamp_prolog()
    s += """
  s_load_dwordx2 s[4:5], s[0:1], 0
  v_lshrrev_b32 v1, 6, v0
  s_nop 0
  v_readfirstlane_b32 s20, v1
  v_and_b32 v2, 31, v0
  v_bfe_u32 v3, v0, 5, 1
  v_lshlrev_b32 v3, 4, v3
  s_movk_i32 s30, 896
  v_mul_lo_u32 v2, v2, s30
  v_add_u32 v2, v2, v3
  s_waitcnt lgkmcnt(0)
  s_mov_b32 s8, s4
  s_mov_b32 s9, s5
  s_mov_b32 s10, 1835008
  s_mov_b32 s11, 0x20000
  s_lshr_b32 s21, s2, 3
  s_and_b32 s21, s21, 1
  s_and_b32 s22, s2, 7
  s_lshl_b32 s22, s22, 1
  s_add_u32 s21, s21, s22       ; row block 0..15
  s_mul_i32 s21, s21, %d
  s_and_b32 s22, s20, 3
  s_mul_i32 s22, s22, %d
  s_add_u32 s21, s21, s22
""" % (128 * 896, 32 * 896)
    for p in range(passes):
        for i in range(28):
            s += "  buffer_load_dwordx4 v[%d:%d], v2, s[8:11], s21 offen offset:%d\n" % (8 + 4 * i, 11 + 4 * i, 32 * i)
        s += "  s_waitcnt vmcnt(0)\n  s_barrier\n"
        s += stamp(2 + p)
        s += "  s_xor_b32 s21, s21, %d\n" % (0)
    s += stamp_epilog(2 + passes)
    return s
open("mb_xf4.s", "w").write(wrap([(K, xfrag(4, False), 128, 128, 100)], [(K, 256, 256, 0)]))
open("mb_xf8.s", "w").write(wrap([(K, xfrag(8, True), 128, 128, 100)], [(K, 256, 512, 0)]))

def l1hit(nwaves, n, passes=3):
    s = stamp_prolog()
    s += """
  s_load_dwordx2 s[4:5], s[0:1], 0
  v_and_b32 v2, 63, v0
  v_lshlrev_b32 v2, 4, v2
  s_waitcnt lgkmcnt(0)
  s_mov_b32 s8, s4
  s_mov_b32 s9, s5
  s_mov_b32 s10, 1835008
  s_mov_b32 s11, 0x20000
  s_mov_b32 s21, 0
"""
    for p in range(passes):
        for i in range(n):
            s += "  buffer_load_dwordx4 v[%d:%d], v2, s[8:11], s21 offen offset:%d\n" % (8 + 4 * (i % 28), 11 + 4 * (i % 28), 1024 * (i % 4))
        s += "  s_waitcnt vmcnt(0)\n  s_barrier\n"
        s += stamp(2 + p)
    s += stamp_epilog(2 + passes)
    return s
open("mb_l1hit.s", "w").write(wrap([(K, l1hit(4, 56), 128, 128, 100)], [(K, 256, 256, 0)]))

def icache(seg_kb=2, nseg=7, pre=0):
    s = stamp_prolog()
    if pre:
        s += """
  s_getpc_b64 s[30:31]
  v_and_b32 v2, 63, v0
  v_lshlrev_b32 v2, 7, v2
  v_lshrrev_b32 v3, 6, v0
  v_lshl_add_u32 v2, v3, 13, v2
  v_cmp_gt_u32 vcc, %d, v2
  s_and_saveexec_b64 s[32:33], vcc
  global_load_dword v4, v2, s[30:31]
  s_mov_b64 exec, s[32:33]
  s_waitcnt vmcnt(0)
""" % (seg_kb * nseg * 1024)
    s += "  s_mov_b32 s40, 0\nL_top:\n"
    for i in range(nseg):
        s += "  s_cmp_eq_u32 s40, 0\n  s_cbranch_scc0 L_s%d\n" % i
        s += stamp(2 + i)
        s += "  s_branch L_t%d\nL_s%d:\n" % (i, i)
        s += stamp(2 + nseg + 1 + i)
        s += "L_t%d:\n" % i
        for k in range(seg_kb * 128):
            s += "  s_mov_b32 s41, 0x12345678\n"
    s += "  s_cmp_eq_u32 s40, 0\n  s_cbranch_scc0 L_done\n"
    s += stamp(2 + nseg)
    s += "  s_mov_b32 s40, 1\n  s_branch L_top\nL_done:\n"
    s += stamp(2 + 2 * nseg + 1)
    s += stamp_epilog(2 + 2 * nseg + 2)
    return s
open("mb_ic8.s", "w").write(wrap([(K, icache(), 32, 32, 102)], [(K, 256, 512, 160*1024)]))
open("mb_ic1.s", "w").write(wrap([(K, icache(), 32, 32, 102)], [(K, 256, 64, 160*1024)]))
open("mb_ic8p.s", "w").write(wrap([(K, icache(pre=1), 32, 32, 102)], [(K, 256, 512, 160*1024)]))

def startlat(mode):
    s = stamp_prolog()
    s += """
  s_load_dwordx2 s[4:5], s[0:1], 0
  s_load_dwordx2 s[6:7], s[0:1], 32
  s_load_dwordx2 s[16:17], s[0:1], 48
  v_lshrrev_b32 v1, 6, v0
  v_and_b32 v2, 63, v0
  v_readfirstlane_b32 s20, v1
  v_lshrrev_b32 v3, 3, v2
  v_and_b32 v4, 7, v2
  v_lshl_add_u32 v5, s20, 3, v3
  v_mul_u32_u24 v6, 896, v5
  v_lshl_add_u32 v6, v4, 4, v6
  v_mul_u32_u24 v7, 3584, v5
  v_lshl_add_u32 v7, v4, 4, v7      ; w pattern
  s_lshr_b32 s21, s2, 3
  s_and_b32 s22, s21, 7
  s_and_b32 s23, s2, 1
  s_lshl_b32 s23, s23, 3
  s_add_u32 s22, s22, s23           ; rb
  s_mul_i32 s24, s22, 114688
  s_and_b32 s25, s2, 6
  s_mul_i32 s25, s25, 448
  s_lshl_b32 s26, s20, 10
  s_waitcnt lgkmcnt(0)
  s_mov_b32 s8, s4
  s_mov_b32 s9, s5
  s_mov_b32 s10, 1835008
  s_mov_b32 s11, 0x20000
  s_mov_b32 s12, s6
  s_mov_b32 s13, s7
  s_mov_b32 s14, 1605632
  s_mov_b32 s15, 0x20000
  s_mov_b32 s28, s16
  s_mov_b32 s29, s17
  s_mov_b32 s30, 1605632
  s_mov_b32 s31, 0x20000
  s_mov_b32 m0, s26
"""
    s += stamp(2)
    if mode == 0:
        s += "  buffer_load_dwordx4 v6, s[8:11], s24 offen lds\n  s_waitcnt vmcnt(0)\n" + stamp(3)
        s += "  buffer_load_dwordx4 v7, s[12:15], s25 offen lds\n  s_waitcnt vmcnt(0)\n" + stamp(4)
        s += "  buffer_load_dwordx4 v6, s[8:11], s24 offen offset:128 lds\n  s_waitcnt vmcnt(0)\n" + stamp(5)
        s += "  buffer_load_dwordx4 v7, s[12:15], s25 offen offset:128 lds\n  s_waitcnt vmcnt(0)\n" + stamp(6)
        s += "  s_add_u32 s25, s25, 229376\n  buffer_load_dwordx4 v7, s[12:15], s25 offen lds\n  s_waitcnt vmcnt(0)\n" + stamp(7)
        s += "  buffer_load_dwordx4 v6, s[28:31], s25 offen lds\n  s_waitcnt vmcnt(0)\n" + stamp(8)
    else:
        s += "  buffer_load_dwordx4 v6, s[8:11], s24 offen lds\n  buffer_load_dwordx4 v7, s[12:15], s25 offen lds\n  buffer_load_dwordx4 v6, s[28:31], s25 offen lds\n"
        s += stamp(3)
        s += "  s_waitcnt vmcnt(2)\n" + stamp(4) + "  s_waitcnt vmcnt(1)\n" + stamp(5) + "  s_waitcnt vmcnt(0)\n" + stamp(6)
        for k in range(2):
            s += "  s_add_u32 s25, s25, 229376\n"
            for p in range(3):
                s += "  buffer_load_dwordx4 v7, s[12:15], s25 offen offset:%d lds\n" % (128 * p)
            s += "  buffer_load_dwordx4 v6, s[8:11], s24 offen offset:%d lds\n" % (128 + 256 * k)
            s += "  buffer_load_dwordx4 v6, s[8:11], s24 offen offset:%d lds\n" % (256 + 256 * k)
            s += "  s_waitcnt vmcnt(0)\n" + stamp(7 + k)
    s += stamp_epilog(9)
    return s
open("mb_sl0.s", "w").write(wrap([(K, startlat(0), 32, 32, 102)], [(K, 256, 512, 160*1024)]))
open("mb_sl1.s", "w").write(wrap([(K, startlat(1), 32, 32, 102)], [(K, 256, 512, 160*1024)]))

def valu(kinds, n=64):
    s = stamp_prolog()
    s += "  s_mov_b32 s30, 0x3fb8aa3b\n  s_mov_b32 s31, 0x3fb8aa3b\n"
    for i in range(64): s += "  v_mov_b32 v%d, 1.0\n" % (i)
    s += "  s_barrier\n"
    s += stamp(2) + "  s_waitcnt lgkmcnt(0)\n"
    for j, kf in enumerate(kinds):
        s += "  s_barrier\n"
        for i in range(n): s += "  " + kf(i) + "\n"
        s += stamp(3 + j) + "  s_waitcnt lgkmcnt(0)\n"
    s += "  v_mov_b32 v0, v100\n"
    s += stamp_epilog(3 + len(kinds))
    return "  v_mov_b32 v100, v0\n" + s
def mishblk(pk):
    L = []
    for rep in range(4):
      for b in range(2):
        A = 64 + 8 * b; T = 32
        if not pk:
            L += ["v_mul_f32 v%d, s30, v%d" % (T + i, A + i) for i in range(8)]
        else:
            L += ["v_pk_mul_f32 v[%d:%d], s[30:31], v[%d:%d]" % (T + i, T + i + 1, A + i, A + i + 1) for i in range(0, 8, 2)]
        L += ["v_exp_f32 v%d, v%d" % (T + i, T + i) for i in range(8)]
        if not pk:
            L += ["v_fma_f32 v%d, v%d, 0.5, 1.0" % (T + 8 + i, T + i) for i in range(8)]
            L += ["v_fma_f32 v%d, v%d, v%d, 1.0" % (T + i, T + i, T + 8 + i) for i in range(8)]
        else:
            L += ["v_pk_fma_f32 v[%d:%d], v[%d:%d], 0.5, 1.0 op_sel_hi:[1,0,0]" % (T + 8 + i, T + 9 + i, T + i, T + i + 1) for i in range(0, 8, 2)]
            L += ["v_pk_fma_f32 v[%d:%d], v[%d:%d], v[%d:%d], 1.0 op_sel_hi:[1,1,0]" % (T + i, T + i + 1, T + i, T + i + 1, T + 8 + i, T + 9 + i) for i in range(0, 8, 2)]
        L += ["v_rcp_f32 v%d, v%d" % (T + i, T + i) for i in range(8)]
        if not pk:
            L += ["v_fma_f32 v%d, -v%d, v%d, v%d" % (T + i, A + i, T + i, A + i) for i in range(8)]
        else:
            L += ["v_pk_fma_f32 v[%d:%d], v[%d:%d], v[%d:%d], v[%d:%d] neg_lo:[1,0,0] neg_hi:[1,0,0]" % (T + i, T + i + 1, A + i, A + i + 1, T + i, T + i + 1, A + i, A + i + 1) for i in range(0, 8, 2)]
        L += ["v_cvt_pk_bf16_f32 v%d, v%d, v%d" % (56 + 4 * b + i // 2, T + i, T + i + 1) for i in range(0, 8, 2)]
    return "\n  ".join(L)
def mishil():
    L = []
    for rep in range(4):
        A0, A1, T0, T1 = 64, 72, 16, 32
        st = lambda A, T: [["v_mul_f32 v%d, s30, v%d" % (T + i, A + i) for i in range(8)],
                           ["v_exp_f32 v%d, v%d" % (T + i, T + i) for i in range(8)],
                           [x for i in range(8) for x in ("v_fma_f32 v%d, v%d, 0.5, 1.0" % (T + 8 + i, T + i),)] + ["v_fma_f32 v%d, v%d, v%d, 1.0" % (T + i, T + i, T + 8 + i) for i in range(8)],
                           ["v_rcp_f32 v%d, v%d" % (T + i, T + i) for i in range(8)],
                           ["v_fma_f32 v%d, -v%d, v%d, v%d" % (T + i, A + i, T + i, A + i) for i in range(8)] + ["v_cvt_pk_bf16_f32 v%d, v%d, v%d" % (56 + i // 2, T + i, T + i + 1) for i in range(0, 8, 2)]]
        a = st(A0, T0); b = st(A1, T1)
        def mix(x, y):
            o = []; i = j = 0
            while i < len(x) or j < len(y):
                if i * len(y) <= j * len(x) and i < len(x): o.append(x[i]); i += 1
                elif j < len(y): o.append(y[j]); j += 1
                else: o.append(x[i]); i += 1
            return o
        L += a[0] + mix(a[1], b[0]) + mix(b[1], a[2]) + mix(a[3], b[2]) + mix(b[3], a[4]) + b[4]
    return "\n  ".join(L)
kinds = [lambda i: "v_fma_f32 v%d, v%d, v%d, 1.0" % (i % 32, i % 32, 32 + i % 32),
         lambda i: "v_pk_fma_f32 v[%d:%d], v[%d:%d], v[%d:%d], v[%d:%d]" % ((2*i % 32, 2*i % 32 + 1) * 2 + (32 + 2*i % 32, 33 + 2*i % 32) * 2),
         lambda i: "v_exp_f32 v%d, v%d" % (i % 32, 32 + i % 32),
         lambda i: "v_rcp_f32 v%d, v%d" % (i % 32, 32 + i % 32),
         lambda i: ("v_exp_f32 v%d, v%d" % (i % 32, 32 + i % 32)) if i % 2 else ("v_fma_f32 v%d, v%d, v%d, 1.0" % (i % 32, i % 32, 32 + i % 32)),
         lambda i: "v_cvt_pk_bf16_f32 v%d, v%d, v%d" % (i % 32, 32 + i % 32, 33 + i % 31),
         lambda i: mishblk(False) if i == 0 else "",
         lambda i: mishblk(True) if i == 0 else "",
         lambda i: mishil() if i == 0 else "",
         lambda i: "s_mul_i32 s40, s40, 3",
         lambda i: "s_add_u32 s40, s40, 3",
         ]
open("mb_valu8.s", "w").write(wrap([(K, valu(kinds), 128, 128, 102)], [(K, 256, 512, 160*1024)]))
open("mb_valu4.s", "w").write(wrap([(K, valu(kinds), 128, 128, 102)], [(K, 256, 256, 160*1024)]))
```

```python
import sys
NAME = "gated_mix__linear_attn_block__dense_activation_mish__prompt"

class Cfg:
    stamps = 0
    spin_limit = 1 << 20
    dbgwg = -1
    bd1 = 0
    bd2 = 1
    prio = 0
    pk1 = 0
    f1pos = 18
    pollpos = 18
cfg = Cfg()

TG_STRIDE = 144 * 1024
WS_KV = 0x1000000
WS_G = WS_KV + 0x10000
WS_FH = WS_G + 0x2000
WS_FR = WS_FH + 0x400
WS_BYTES = 0x1100000
WS_STAMP = 0x8000000

AS = [65536, 131072, 98304]
QR = 0
MISC = 57344
KVSCR = 98304
SR = 98304
def WT(n): return (9 - n % 6) * 16384
def AT(n): return (n % 3) * 16384
LDS_BYTES = 163840

sX, sWQKV, sWO, sW1, sB1, sW2, sGATE, sOUT, sDBG, sWS = 4, 6, 8, 12, 14, 16, 18, 20, 22, 24
sLdsW, sLdsX = 10, 11
sL2 = 26
sLog2e = 26
sEp = 86
sEps = 86
SRD_X, SRD_W, SRD_W2, SRD_WO, SRD_WS, SRD_OUT = 28, 32, 36, 40, 44, 48
sWave, sRB, sJ, sRot, sTB, sCB, sRole, sTG = 52, 53, 54, 55, 56, 57, 58, 59
sNonce = 60
sT0, sT1, sT2, sT3, sT4, sT5 = 62, 63, 64, 65, 66, 67
sXc = 68
sWc = 75
sActBase, sSlot, sCnt, sRot2 = 82, 83, 84, 85
sMask = 86
sPark, sSlotH, sStage, sP2, sHalf = 88, 89, 91, 92, 93
sOutB = 90
sStamp = 94
sW8, sRB2 = 96, 97
sTile0, sTileS = 100, 101
sWbase, sSbase = sXc, sXc + 1
vLane, vXd0, vXd1, vWd, vSd = 1, 2, 3, 4, 5
vVpad = 5
vXr = 6
vTr, vTr2, vL16, vFl = 10, 11, 12, 13
vGate = 14
vPoll = 16
vW2d = 18
vZero = 22
vSt = 23
vFlag = 24
vAr, vWlo, vWhi, vOut, vG, vTrS = 26, 27, 28, 29, 30, 31
ACC = [32, 48, 64, 80]
TMP = 96
PK = 120
NVG = 128
NAG = 112

class Gen:
    def __init__(self):
        self.L = []; self.q = []; self.lq = []; self.nlab = 0; self.pend = None
    def e(self, s): self.L.append("  " + s)
    def lab(self, s): self.L.append(s + ":")
    def newlab(self, p="L"):
        self.nlab += 1
        return "%s_%d" % (p, self.nlab)
    def vm(self, s, tag):
        self.e(s); self.q.append(tag)
    def vcount(self, tags):
        if isinstance(tags, str): tags = [tags]
        last = -1
        for i, t in enumerate(self.q):
            if t in tags: last = i
        if last < 0: return None
        n = len(self.q) - 1 - last
        assert n <= 63
        self.q = self.q[last + 1:]
        return n
    def wait(self, tags, lgkm0=False, must=True):
        n = self.vcount(tags)
        assert n is not None or not must, ("tag not in queue", tags, self.q)
        s = []
        if n is not None: s.append("vmcnt(%d)" % n)
        if lgkm0: s.append("lgkmcnt(0)"); self.lq = []
        if s: self.e("s_waitcnt " + " ".join(s))
        if lgkm0: self.flush()
    def wait_all(self, lgkm0=False):
        self.e("s_waitcnt vmcnt(0)" + (" lgkmcnt(0)" if lgkm0 else "")); self.q = []
        if lgkm0: self.lq = []
    def ds(self, s, tag):
        self.e(s); self.lq.append(tag)
        assert len(self.lq) <= 15, self.lq
    def lwait(self, tag):
        last = -1
        for i, t in enumerate(self.lq):
            if t == tag: last = i
        if last < 0: return
        self.e("s_waitcnt lgkmcnt(%d)" % (len(self.lq) - 1 - last))
        self.lq = self.lq[last + 1:]
    def lwait0(self):
        self.e("s_waitcnt lgkmcnt(0)"); self.lq = []
        self.flush()
    def lazy(self, idx):
        if not cfg.stamps: return
        assert self.pend is None
        self.e("s_memtime s[0:1]")
        self.pend = idx
    def flush(self):
        if self.pend is not None:
            self.e("v_writelane_b32 v%d, s0, %d" % (vSt, self.pend)); self.pend = None
    def stamp(self, idx):
        if not cfg.stamps: return
        self.e("s_memtime s[%d:%d]" % (sStamp, sStamp + 1))
        self.e("s_waitcnt lgkmcnt(0)")
        self.e("v_writelane_b32 v%d, s%d, %d" % (vSt, sStamp, idx))
        self.flush()

g = Gen()
e = g.e

def R(b, n=4, p="v"): return "%s[%d:%d]" % (p, b, b + n - 1)

def dma(srd, voff, soff, m0, tag, imm=0, sc=""):
    if m0 is not None:
        e("s_add_u32 m0, s%d, %d" % m0)
        e("s_nop 0")
    g.vm("buffer_load_dwordx4 v%d, s[%d:%d], s%d offen%s%s lds" % (voff, srd, srd + 3, soff, (" offset:%d" % imm) if imm else "", (" " + sc) if sc else ""), tag)

def mfma(d, a, b, c):
    e("v_mfma_f32_32x32x16_bf16 %s, %s, %s, %s" % (d, a, b, c))

def mfma_fence():
    e("s_nop 7"); e("s_nop 4")

def barrier(): e("s_barrier")

def pipe(items, D, bnd, fill, bd):
    N = len(items); nr = 0
    def reads(upto, i):
        nonlocal nr
        while nr <= upto and nr < N:
            if nr in bnd:
                if i is not None and i < nr - D + bd: break
                bnd[nr]()
            items[nr][0](); nr += 1
    reads(D - 1, None)
    for i in range(N):
        assert nr > i
        items[i][1]()
        reads(i + D, i)
        for f in fill.get(i, []): f()

def spread(fill, fns, lo, hi):
    n = len(fns)
    for k, f in enumerate(fns):
        pos = lo + (k * (hi - lo)) // n
        fill.setdefault(pos, []).append(f)

def epi_mish(acc, sbase, off, tag, fills=(), pk=False):
    T = TMP
    fills = list(fills)
    def F():
        if fills: fills.pop(0)()
    P = lambda r: "v[%d:%d]" % (r, r + 1)
    for b in range(0, 16, 8):
        r = range(b, b + 8); r2 = range(b, b + 8, 2)
        if pk:
            for i in r2: e("v_pk_mul_f32 %s, s[%d:%d], %s" % (P(T + i - b), sL2, sL2 + 1, P(acc + i)))
        else:
            for i in r: e("v_mul_f32 v%d, s%d, v%d" % (T + i - b, sL2, acc + i))
        for i in r: e("v_exp_f32 v%d, v%d" % (T + i - b, T + i - b))
        F()
        if pk:
            for i in r2: e("v_pk_fma_f32 %s, %s, 0.5, 1.0 op_sel_hi:[1,0,0]" % (P(T + 8 + i - b), P(T + i - b)))
            for i in r2: e("v_pk_fma_f32 %s, %s, %s, 1.0 op_sel_hi:[1,1,0]" % (P(T + i - b), P(T + i - b), P(T + 8 + i - b)))
        else:
            for i in r: e("v_fma_f32 v%d, v%d, 0.5, 1.0" % (T + 8 + i - b, T + i - b))
            for i in r: e("v_fma_f32 v%d, v%d, v%d, 1.0" % (T + i - b, T + i - b, T + 8 + i - b))
        F()
        for i in r: e("v_rcp_f32 v%d, v%d" % (T + i - b, T + i - b))
        F()
        if pk:
            for i in r2: e("v_pk_fma_f32 %s, %s, %s, %s neg_lo:[1,0,0] neg_hi:[1,0,0]" % (P(T + i - b), P(acc + i), P(T + i - b), P(acc + i)))
        else:
            for i in r: e("v_fma_f32 v%d, -v%d, v%d, v%d" % (T + i - b, acc + i, T + i - b, acc + i))
        e("s_add_u32 s%d, s%d, %d" % (sT0, sbase, off + (b // 8) * 1024))
        for i in range(0, 8, 2):
            e("v_cvt_pk_bf16_f32 v%d, v%d, v%d" % (PK + (b + i) // 2, T + i, T + i + 1))
        g.vm("buffer_store_dwordx4 %s, v%d, s[%d:%d], s%d offen sc0 sc1" % (R(PK + b // 2), vL16, SRD_WS, SRD_WS + 3, sT0), tag)
        F()
    while fills: F()

def epi_phi(acc, dst, fills=()):
    T = TMP
    fills = list(fills)
    def F():
        if fills: fills.pop(0)()
    P = lambda r: "v[%d:%d]" % (r, r + 1)
    for b in range(0, 16, 8):
        r = range(b, b + 8); r2 = range(b, b + 8, 2)
        for i in r2: e("v_pk_mul_f32 %s, s[%d:%d], %s" % (P(T + i - b), sL2, sL2 + 1, P(acc + i)))
        for i in r: e("v_exp_f32_e64 v%d, v%d clamp" % (T + i - b, T + i - b))
        F()
        for i in r: e("v_max_f32 v%d, 0, v%d" % (T + 8 + i - b, acc + i))
        for i in r2: e("v_pk_add_f32 %s, %s, %s" % (P(T + i - b), P(T + i - b), P(T + 8 + i - b)))
        for i in r2: e("v_pk_add_f32 %s, s[%d:%d], %s" % (P(T + i - b), sEp, sEp + 1, P(T + i - b)))
        for i in range(0, 8, 2):
            e("v_cvt_pk_bf16_f32 v%d, v%d, v%d" % (dst + (b + i) // 2, T + i, T + i + 1))
        F()
    while fills: F()

def flag_off(base, hi, lo):
    e("s_lshl_b32 s%d, s%d, 7" % (sT0, hi))
    e("s_lshl_b32 s%d, s%d, 3" % (sT1, lo))
    e("s_add_u32 s%d, s%d, s%d" % (sT0, sT0, sT1))
    e("s_add_u32 s%d, s%d, %d" % (sT0, sT0, base))

def write_flag(kind, stage):
    if kind == "FR": flag_off(WS_FR, sRB, sRole)
    else: flag_off(WS_FH, sJ, sRB)
    e("s_or_b32 s%d, s%d, %d" % (sT1, sNonce, stage))
    e("v_mov_b32 v%d, s%d" % (vFlag, sT1))
    e("v_mov_b32 v%d, s%d" % (vFlag + 1, sNonce + 1))
    e("s_mov_b64 exec, 1")
    e("buffer_store_dwordx2 %s, v%d, s[%d:%d], s%d offen sc0 sc1" % (R(vFlag, 2), vZero, SRD_WS, SRD_WS + 3, sT0))
    e("s_mov_b64 exec, -1")

def poll_instr(soff):
    return "buffer_load_dwordx2 %s, v%d, s[%d:%d], s%d offen sc1" % (R(vPoll, 2), vFl, SRD_WS, SRD_WS + 3, soff)

def poll_check(soff, stage, mask):
    again = g.newlab("L_poll"); ok = g.newlab("L_pok"); chk = g.newlab("L_pchk")
    e("s_mov_b32 s%d, %d" % (sCnt, cfg.spin_limit))
    e("s_branch %s" % chk)
    g.lab(again)
    e("s_sleep 1")
    e(poll_instr(soff))
    e("s_waitcnt vmcnt(0)")
    g.lab(chk)
    e("v_xor_b32 v%d, s%d, v%d" % (vPoll, sNonce, vPoll))
    e("v_xor_b32 v%d, s%d, v%d" % (vPoll + 1, sNonce + 1, vPoll + 1))
    e("v_cmp_le_u32 vcc, %d, v%d" % (stage, vPoll))
    e("v_cmp_ge_u32 s[%d:%d], 3, v%d" % (sT2, sT3, vPoll))
    e("s_and_b32 vcc_lo, vcc_lo, s%d" % sT2)
    e("v_cmp_eq_u32 s[%d:%d], 0, v%d" % (sT2, sT3, vPoll + 1))
    e("s_and_b32 vcc_lo, vcc_lo, s%d" % sT2)
    e("s_and_b32 s%d, vcc_lo, %d" % (sT2, mask))
    e("s_cmp_eq_u32 s%d, %d" % (sT2, mask))
    e("s_cbranch_scc1 %s" % ok)
    e("s_sub_u32 s%d, s%d, 1" % (sCnt, sCnt))
    e("s_cmp_lg_u32 s%d, 0" % sCnt)
    e("s_cbranch_scc1 %s" % again)
    g.lab(ok)

def nonce_issue():
    g.vm("global_load_dwordx2 %s, v%d, s[%d:%d] sc1" % (R(vPoll, 2), vZero, sDBG, sDBG + 1), "nonce")

def nonce_get():
    again = g.newlab("L_non"); ok = g.newlab("L_nok"); chk = g.newlab("L_nchk")
    e("s_mov_b32 s%d, %d" % (sCnt, cfg.spin_limit))
    e("s_branch %s" % chk)
    g.lab(again)
    e("s_sleep 1")
    e("global_load_dwordx2 %s, v%d, s[%d:%d] sc1" % (R(vPoll, 2), vZero, sDBG, sDBG + 1))
    e("s_waitcnt vmcnt(0)")
    g.lab(chk)
    e("v_readfirstlane_b32 s%d, v%d" % (sNonce, vPoll))
    e("v_readfirstlane_b32 s%d, v%d" % (sNonce + 1, vPoll + 1))
    e("s_nop 3")
    e("s_cmp_lg_u32 s%d, 0" % (sNonce + 1))
    e("s_cbranch_scc1 %s" % ok)
    e("s_sub_u32 s%d, s%d, 1" % (sCnt, sCnt))
    e("s_cmp_lg_u32 s%d, 0" % sCnt)
    e("s_cbranch_scc1 %s" % again)
    g.lab(ok)

def cond(cmp, fn):
    skip = g.newlab("L_skip")
    e(cmp)
    e("s_cbranch_scc1 %s" % skip)
    q, lq = list(g.q), list(g.lq)
    fn()
    g.q, g.lq = q, lq
    g.lab(skip)
def only_wave(w, fn): cond("s_cmp_lg_u32 s%d, %d" % (sWave, w), fn)
def only_att(fn): cond("s_cmp_ge_u32 s%d, 8" % sRole, fn)
def only_ffn(fn): cond("s_cmp_lt_u32 s%d, 8" % sRole, fn)

def chunk_id(n, sreg, add):
    if n < 4: base, cnt, kind = 0, 8, 0
    elif n < 8: base, cnt, kind = 4, 8, 1
    else: base, cnt, kind = 8, 12, 2
    e("s_add_u32 s%d, s%d, %d" % (sT2, sreg, add + 2 * (n - base)))
    if cnt == 8:
        e("s_bfe_u32 s%d, s%d, 0x20001" % (sT3, sT2))
        e("s_and_b32 s%d, s%d, 1" % (sT2, sT2))
        e("s_lshl_b32 s%d, s%d, 2" % (sT2, sT2))
        e("s_mul_i32 s%d, s%d, 7" % (sT3, sT3))
        e("s_add_u32 s%d, s%d, s%d" % (sT2, sT2, sT3))
        if kind: e("s_add_u32 s%d, s%d, 1" % (sT2, sT2))
    else:
        for _ in range(2):
            e("s_cmp_ge_u32 s%d, 12" % sT2)
            e("s_cselect_b32 s%d, 12, 0" % sT3)
            e("s_sub_u32 s%d, s%d, s%d" % (sT2, sT2, sT3))
        e("s_mul_i32 s%d, s%d, 43" % (sT3, sT2))
        e("s_lshr_b32 s%d, s%d, 7" % (sT3, sT3))
        e("s_mul_i32 s%d, s%d, 3" % (sT4, sT3))
        e("s_sub_u32 s%d, s%d, s%d" % (sT2, sT2, sT4))
        e("s_cmp_eq_u32 s%d, 2" % sT2)
        e("s_cselect_b32 s%d, 4, s%d" % (sT2, sT2))
        e("s_mul_i32 s%d, s%d, 7" % (sT3, sT3))
        e("s_add_u32 s%d, s%d, s%d" % (sT2, sT2, sT3))
        e("s_add_u32 s%d, s%d, 2" % (sT2, sT2))

def park(n, h):
    chunk_id(n, sRot2, h)
    e("s_mul_i32 s%d, s%d, %d" % (sT0, sT2, 64 * 896))
    e("s_add_u32 s%d, s%d, s%d" % (sT0, sT0, sPark))
    dma(SRD_W2, vW2d, sT0, (sLdsW, WT(n) + h * 8192), "W%d" % n)

def p2_issue_A(n):
    if n < 14:
        chunk_id(n, sP2, 0)
        e("s_lshl_b32 s%d, s%d, 12" % (sT0, sT2))
        e("s_add_u32 s%d, s%d, %d" % (sT0, sT0, 32 * 1024))
    else:
        e("s_add_u32 s%d, s%d, %d" % (sT2, sP2, 2 * (n - 14)))
        e("s_and_b32 s%d, s%d, 7" % (sT2, sT2))
        e("s_lshl_b32 s%d, s%d, 12" % (sT0, sT2))
    e("s_add_u32 s%d, s%d, s%d" % (sT0, sT0, sActBase))
    for i in range(4):
        dma(SRD_WS, vL16, sT0, (sW8, AT(n)) if i == 0 else None, "A%d" % n, imm=i * 1024, sc="sc1")

def p2_issue_W(n):
    if n < 14:
        chunk_id(n, sP2, 0)
        e("s_mul_i32 s%d, s%d, %d" % (sT0, sT2, 64 * 896))
        e("s_add_u32 s%d, s%d, s%d" % (sT0, sT0, sWbase))
        srd = SRD_W2
    else:
        e("s_add_u32 s%d, s%d, %d" % (sT2, sP2, 2 * (n - 14)))
        e("s_and_b32 s%d, s%d, 7" % (sT2, sT2))
        e("s_mul_i32 s%d, s%d, %d" % (sT0, sT2, 56 * 896))
        e("s_add_u32 s%d, s%d, s%d" % (sT0, sT0, sSbase))
        srd = SRD_WO
    for i in range(4):
        dma(srd, vW2d + i, sT0, (sW8, WT(n)) if i == 0 else None, "W%d" % n, imm=i * 1024)

def producer_setup():
    e("s_sub_u32 s%d, s%d, 4" % (sT3, sWave))
    e("s_lshr_b32 s%d, s%d, 1" % (sT1, sT3))
    e("s_add_u32 s%d, s%d, s%d" % (sP2, sRot2, sT1))
    e("s_and_b32 s%d, s%d, 1" % (sT0, sT3))
    e("s_lshl_b32 s%d, s%d, 12" % (sW8, sT3))
    e("s_lshl_b32 s%d, s%d, 7" % (sT1, sCB))
    e("s_mul_i32 s%d, s%d, %d" % (sT2, sT0, 32 * 896))
    e("s_add_u32 s%d, s%d, s%d" % (sWbase, sT1, sT2))
    e("s_mul_i32 s%d, s%d, %d" % (sT2, sT0, 28 * 896))
    e("s_add_u32 s%d, s%d, s%d" % (sSbase, sT1, sT2))
    e("s_lshl_b32 s%d, s%d, 1" % (sT1, sTB))
    e("s_add_u32 s%d, s%d, s%d" % (sT0, sT0, sT1))
    e("s_mul_i32 s%d, s%d, %d" % (sActBase, sT0, TG_STRIDE))

def srd(d, p, n):
    e("s_mov_b32 s%d, s%d" % (d, p)); e("s_mov_b32 s%d, s%d" % (d + 1, p + 1))
    e("s_mov_b32 s%d, %d" % (d + 2, n)); e("s_mov_b32 s%d, 0x20000" % (d + 3))

def tables(us, wstep):
    for u in us:
        e("s_cmp_ge_u32 s%d, %d" % (sRot, 7 - u))
        e("s_cselect_b32 s%d, s%d, s%d" % (sXc + u, sT1, sT0))
        e("s_cselect_b32 s%d, s%d, s%d" % (sWc + u, sT3, sT2))
        if u:
            e("s_add_u32 s%d, s%d, %d" % (sXc + u, sXc + u, 128 * u))
            e("s_add_u32 s%d, s%d, %d" % (sWc + u, sWc + u, wstep * u))

def x_dma(u, base):
    def f0(): dma(SRD_X, vXd0, sXc + u, (sLdsX, base), "c%d" % u)
    def f1(): dma(SRD_X, vXd1, sXc + u, (sLdsX, base), "c%d" % u, imm=1024)
    return [f0, f1]

def tr_addr(d, mulhalf_sreg, rowreg, T):
    e("v_add_u32 v%d, s%d, v%d" % (T + 14, mulhalf_sreg, T + 12))
    e("v_lshrrev_b32 v%d, 1, v%d" % (T + 1, T + 14))
    e("v_and_b32 v%d, 2, v%d" % (T + 2, T + 9))
    e("v_lshlrev_b32 v%d, 1, v%d" % (T + 2, T + 2))
    e("v_xor_b32 v%d, v%d, v%d" % (T + 1, T + 1, T + 2))
    e("v_and_b32 v%d, 1, v%d" % (T + 14, T + 14))
    e("v_lshlrev_b32 v%d, 3, v%d" % (T + 14, T + 14))
    e("v_lshl_add_u32 v%d, v%d, 4, v%d" % (T + 14, T + 1, T + 14))
    e("v_lshl_add_u32 v%d, v%d, 7, v%d" % (d, rowreg, T + 14))

def setup_min(att):
    T = TMP
    e("s_and_b32 s%d, s%d, 3" % (sTG, sWave))
    e("s_lshr_b32 s%d, s%d, 2" % (sHalf, sWave))
    e("v_and_b32 v%d, 31, v%d" % (T + 6, vLane))
    e("v_lshrrev_b32 v%d, 5, v%d" % (T + 7, vLane))
    e("v_bfe_u32 v%d, v%d, 1, 3" % (T + 8, vLane))
    e("v_xor_b32 v%d, v%d, v%d" % (T + 8, T + 8, T + 7))
    e("v_lshlrev_b32 v%d, 4, v%d" % (T + 8, T + 8))
    e("v_lshl_add_u32 v%d, v%d, 7, v%d" % (T + 8, T + 6, T + 8))
    e("s_lshl_b32 s%d, s%d, 12" % (sT4, sTG))
    e("s_add_u32 s%d, s%d, %d" % (sT4, sT4, AS[0]))
    e("s_mul_i32 s%d, s%d, %d" % (sT0, sHalf, 7 if att else 8))
    for s in range(4):
        e("v_xor_b32 v%d, %d, v%d" % (vXr + s, s << 5, T + 8))
        e("v_add_u32 v%d, s%d, v%d" % (vXr + s, sT4, vXr + s))
    e("v_bfe_u32 v%d, v%d, 2, 2" % (T + 9, vLane))
    e("v_and_b32 v%d, 3, v%d" % (T + 10, vLane))
    e("v_bfe_u32 v%d, v%d, 4, 1" % (T + 11, vLane))
    e("v_lshl_add_u32 v%d, v%d, 2, v%d" % (T + 12, T + 11, T + 10))
    e("v_lshl_add_u32 v%d, v%d, 3, v%d" % (T + 13, T + 7, T + 9))
    tr_addr(vTr2, sT0, T + 13, T)
    e("v_add_u32 v%d, %d, v%d" % (vTr, AS[0] + 16384, vTr2))

def setup_pieces():
    T = TMP
    def p0():
        srd(SRD_WS, sWS, WS_BYTES)
        e("v_lshlrev_b32 v%d, 4, v%d" % (vL16, vLane))
        e("s_lshl_b32 s%d, s%d, 2" % (sT4, sRB))
        e("s_add_u32 s%d, s%d, s%d" % (sT4, sT4, sTG))
        e("s_mul_i32 s%d, s%d, %d" % (sActBase, sT4, TG_STRIDE))
    def p1():
        e("s_lshr_b32 s%d, s2, 3" % sT3)
        e("s_mul_i32 s%d, s%d, 37" % (sT4, sT3))
        e("s_lshr_b32 s%d, s%d, 8" % (sT4, sT4))
        e("s_mul_i32 s%d, s%d, 7" % (sT5, sT4))
        e("s_sub_u32 s%d, s%d, s%d" % (sCB, sT3, sT5))
        e("s_and_b32 s%d, s2, 7" % sT0)
        e("s_lshl_b32 s%d, s%d, 2" % (sTB, sT0))
        e("s_add_u32 s%d, s%d, s%d" % (sTB, sTB, sT4))
        e("s_add_u32 s%d, s%d, s%d" % (sRot2, sCB, sT4))
        e("s_lshl_b32 s%d, s%d, 1" % (sRot2, sRot2))
    def p2():
        e("s_lshr_b32 s%d, s%d, 1" % (sRB2, sTB))
        e("s_mul_i32 s%d, s%d, %d" % (sPark, sWave, 8 * 896))
        e("s_lshl_b32 s%d, s%d, 7" % (sT0, sCB))
        e("s_add_u32 s%d, s%d, s%d" % (sPark, sPark, sT0))
        e("s_lshl_b32 s%d, s%d, 7" % (sSlot, sRB2))
        e("s_add_u32 s%d, s%d, %d" % (sSlot, sSlot, WS_FR))
        e("s_lshl_b32 s%d, s%d, 7" % (sSlotH, sJ))
        e("s_add_u32 s%d, s%d, %d" % (sSlotH, sSlotH, WS_FH))
    def p3():
        srd(SRD_W2, sW2, 1792 * 896); srd(SRD_WO, sWO, 448 * 896)
    def p4():
        e("s_mov_b32 s%d, 0x3fb8aa3b" % sL2); e("s_mov_b32 s%d, 0x3fb8aa3b" % (sL2 + 1))
        e("s_mov_b32 s%d, 0x358637bd" % sEp); e("s_mov_b32 s%d, 0x358637bd" % (sEp + 1))
        e("v_and_b32 v%d, 15, v%d" % (vFl, vLane))
        e("v_lshlrev_b32 v%d, 3, v%d" % (vFl, vFl))
        e("v_lshlrev_b32 v%d, 6, v%d" % (vTrS, T + 13))
        e("v_lshl_add_u32 v%d, v%d, 3, v%d" % (vTrS, T + 12, vTrS))
        e("v_add_u32 v%d, %d, v%d" % (vTrS, SR, vTrS))
    def p5():
        e("v_lshl_add_u32 v%d, v%d, 2, v%d" % (T + 4, T + 7, T + 9))
        e("s_and_b32 s%d, s%d, 1" % (sT0, sWave))
        e("s_lshl_b32 s%d, s%d, 3" % (sT1, sT0))
        tr_addr(vWlo, sT1, T + 4, T)
        e("v_add_u32 v%d, %d, v%d" % (vWhi, 7 * 16384, vWlo))
        e("v_add_u32 v%d, %d, v%d" % (vWlo, 4 * 16384, vWlo))
    def p6():
        e("s_and_b32 s%d, s%d, 1" % (sT0, sWave))
        e("s_bfe_u32 s%d, s%d, 0x10001" % (sT1, sWave))
        e("s_lshl_b32 s%d, s%d, 12" % (sT2, sT1))
        e("v_add_u32 v%d, s%d, v%d" % (vAr, sT2, vL16))
        e("s_lshl_b32 s%d, s%d, 1" % (sT2, sTB))
        e("s_add_u32 s%d, s%d, s%d" % (sT2, sT2, sT1))
        e("s_mul_i32 s%d, s%d, %d" % (sOutB, sT2, 32 * 896))
        e("s_lshl_b32 s%d, s%d, 7" % (sT3, sCB))
        e("s_add_u32 s%d, s%d, s%d" % (sOutB, sOutB, sT3))
        e("s_lshl_b32 s%d, s%d, 6" % (sT0, sT0))
        e("s_add_u32 s%d, s%d, s%d" % (sOutB, sOutB, sT0))
        e("s_lshl_b32 s%d, s%d, 7" % (sT2, sT2))
        e("s_add_u32 s%d, s%d, %d" % (sT2, sT2, WS_G))
        e("v_lshl_add_u32 v%d, v%d, 2, s%d" % (vG, T + 6, sT2))
    def p7():
        e("v_mul_u32_u24 v%d, 896, v%d" % (vOut, T + 6))
        e("v_lshl_add_u32 v%d, v%d, 4, v%d" % (vOut, T + 7, vOut))
        e("v_mul_u32_u24 v%d, 896, v%d" % (T + 3, T))
        e("v_lshl_add_u32 v%d, v%d, 4, v%d" % (vW2d, T + 5, T + 3))
        for i in range(1, 4):
            e("v_add_u32 v%d, %d, v%d" % (vW2d + i, i * (8 * 896 - 1024), vW2d))
    return [p0, p1, p2, p3, p4, p5, p6, p7]

def first_part(att):
    T = TMP
    stride = 2688 if att else 3584
    e("s_mul_i32 s%d, s%d, %d" % (sT0, sRB, 128 * 896))
    e("s_lshl_b32 s%d, s%d, 7" % (sT1, sRot))
    e("s_add_u32 s%d, s%d, s%d" % (sT0, sT0, sT1))
    e("s_sub_u32 s%d, s%d, 896" % (sT1, sT0))
    e("s_mul_i32 s%d, s%d, %d" % (sT2, sRot, 64 * stride))
    e("s_mul_i32 s%d, s%d, %d" % (sT3, sJ, 112 if att else 448))
    e("s_add_u32 s%d, s%d, s%d" % (sT2, sT2, sT3))
    e("s_sub_u32 s%d, s%d, %d" % (sT3, sT2, 7 * 64 * stride))
    tables(range(7), 64 * stride)
    e("v_lshl_add_u32 v%d, s%d, 3, v%d" % (T + 3, sWave, T))
    e("v_mul_u32_u24 v%d, %d, v%d" % (T + 3, stride, T + 3))
    if att:
        e("v_min_u32 v%d, 6, v%d" % (T + 4, T + 5))
        e("v_lshl_add_u32 v%d, v%d, 4, v%d" % (vWd, T + 4, T + 3))
    else:
        e("s_and_b32 s%d, s%d, 1" % (sT5, sJ))
        e("s_lshl_b32 s%d, s%d, 6" % (sT4, sT5))
        e("v_lshl_add_u32 v%d, v%d, 4, v%d" % (vWd, T + 5, T + 3))
        e("v_add_u32 v%d, s%d, v%d" % (vWd, sT4, vWd))
        e("s_cmp_eq_u32 s%d, 0" % sT5)
        e("s_cselect_b32 s%d, 384, 0" % sT5)
        e("s_and_b32 s%d, s%d, 3" % (sT4, sWave))
        e("s_mul_i32 s%d, s%d, %d" % (sT4, sT4, 16 * 3584))
        e("s_add_u32 s%d, s%d, s%d" % (sT4, sT4, sT5))
        e("v_lshrrev_b32 v%d, 2, v%d" % (T + 3, vLane))
        e("v_mul_u32_u24 v%d, 3584, v%d" % (T + 3, T + 3))
        e("v_and_b32 v%d, 3, v%d" % (T + 4, vLane))
        e("v_lshl_add_u32 v%d, v%d, 4, v%d" % (vSd, T + 4, T + 3))
        e("v_add_u32 v%d, s%d, v%d" % (vSd, sT4, vSd))
    e("s_waitcnt lgkmcnt(0)")
    e("s_lshl_b32 s%d, s%d, 10" % (sLdsW, sWave))
    e("s_lshl_b32 s%d, s%d, 11" % (sLdsX, sWave))
    srd(SRD_X, sX, 2048 * 896)
    if att: srd(SRD_W, sWQKV, 448 * 2688)
    else: srd(SRD_W, sW1, 448 * 3584)

def publish_nonce():
    e("s_or_b32 s%d, s2, s%d" % (sT4, sWave))
    def f():
        e("s_lshl_b64 s[%d:%d], s[%d:%d], 2" % (sNonce, sNonce + 1, sNonce, sNonce + 1))
        e("s_or_b32 s%d, s%d, 0x40000000" % (sNonce + 1, sNonce + 1))
        e("v_mov_b32 v%d, s%d" % (vFlag, sNonce))
        e("v_mov_b32 v%d, s%d" % (vFlag + 1, sNonce + 1))
        e("s_mov_b64 exec, 1")
        e("global_store_dwordx2 v%d, %s, s[%d:%d] sc0 sc1" % (vZero, R(vFlag, 2), sDBG, sDBG + 1))
        e("s_mov_b64 exec, -1")
    cond("s_cmp_lg_u32 s%d, 0" % sT4, f)

def addr_step(regs, delta):
    for r in regs:
        e("v_add_u32 v%d, 0x%x, v%d" % (r, delta & 0xffffffff, r))

def chunk_dmas(u, att):
    b = AS[u % 3]
    c0, c1 = (896, 1792) if att else (0, 128)
    L = x_dma(u, b)
    L.append(lambda: dma(SRD_W, vWd, sWc + u, (sLdsW, b + 16384 - c0), "c%d" % u, imm=c0))
    L.append(lambda: dma(SRD_W, vWd, sWc + u, (sLdsW, b + 24576 - c1), "c%d" % u, imm=c1))
    return L

def bias_frag(breg):
    e("v_mov_b32 v%d, v%d" % (TMP + 20, breg))
    e("s_nop 1")

def stream(att, extra):
    items = []; bnd = {}; fill = {}
    for u in range(7):
        def boundary(u=u):
            g.wait("c%d" % u, lgkm0=True)
            barrier()
            if u: addr_step([vXr, vXr + 1, vXr + 2, vXr + 3, vTr], AS[u % 3] - AS[(u - 1) % 3])
            for s in range(4):
                g.ds("ds_read_b128 %s, v%d" % (R(16 * u + 4 * s, 4, "a"), vXr + s), "x")
            g.lazy(1 if u == 0 else 57 + u)
        bnd[len(items)] = boundary
        lo = len(items)
        for t in range(2):
            for s in range(4):
                k = len(items); w = 64 + 4 * (k % 8)
                def rd(k=k, w=w, t=t, s=s):
                    o = t * 8192 + s * 2048
                    g.ds("ds_read_b64_tr_b16 %s, v%d offset:%d" % (R(w, 2), vTr, o), k)
                    g.ds("ds_read_b64_tr_b16 %s, v%d offset:%d" % (R(w + 2, 2), vTr, o + 512), k)
                def mf(k=k, w=w, t=t, s=s, u=u):
                    if not att and u == 2 and s == 0:
                        bias_frag(vFlag + t)
                        mfma(R(ACC[t], 16), R(TMP + 20), R(TMP + 16), R(ACC[t], 16))
                    g.lwait(k)
                    X = R(16 * u + 4 * s, 4, "a"); C = "0" if (u == 0 and s == 0) else R(ACC[t], 16)
                    if att: mfma(R(ACC[t], 16), X, R(w), C)
                    else: mfma(R(ACC[t], 16), R(w), X, C)
                items.append((rd, mf))
        hi = len(items)
        fl = chunk_dmas(u + 2, att) if u <= 4 else []
        ex = extra.get(u, [])
        mix = []
        for i in range(max(len(fl), len(ex))):
            if i < len(fl): mix.append(fl[i])
            if i < len(ex): mix.append(ex[i])
        spread(fill, mix, max(lo - 4 + cfg.bd1, 0), (hi - 4 + cfg.bd1) if u < 6 else hi)
    pipe(items, 4, bnd, fill, cfg.bd1)

def tile(acc, areg, rowbytes, base, bias=None, bnd=None, fill=None):
    items = []
    for k in range(28):
        w = 64 + 4 * (k % 8)
        def rd(k=k, w=w):
            g.ds("ds_read_b64_tr_b16 %s, v%d offset:%d" % (R(w, 2), areg, base + k * 16 * rowbytes), k)
            g.ds("ds_read_b64_tr_b16 %s, v%d offset:%d" % (R(w + 2, 2), areg, base + (k * 16 + 4) * rowbytes), k)
        def mf(k=k, w=w):
            if k == 0 and bias is not None:
                bias_frag(bias)
                mfma(R(acc, 16), R(TMP + 20), R(TMP + 16), "0")
            g.lwait(k)
            mfma(R(acc, 16), R(w), R(4 * k, 4, "a"), "0" if (k == 0 and bias is None) else R(acc, 16))
        items.append((rd, mf))
    pipe(items, 4, bnd or {}, fill or {}, 0)

def parks(ns): return [lambda n=n, h=h: park(n, h) for n in ns for h in (0, 1)]

def ffn_path():
    T = TMP
    for f in chunk_dmas(0, False): f()
    setup_min(False)
    for f in chunk_dmas(1, False): f()
    P = setup_pieces()
    def b0():
        e("s_mul_i32 s%d, s%d, 7" % (sT4, sJ))
        e("s_and_b32 s%d, s%d, 1" % (sT5, sJ))
        e("s_add_u32 s%d, s%d, s%d" % (sTile0, sT4, sT5))
        e("s_add_u32 s%d, s%d, s%d" % (sTile0, sTile0, sHalf))
        e("s_cmp_eq_u32 s%d, 0" % sT5)
        e("s_cselect_b32 s%d, 6, 0" % sT5)
        e("s_add_u32 s%d, s%d, s%d" % (sTileS, sT4, sT5))
        srd(SRD_OUT, sB1, 3584)
    def b1():
        e("v_lshlrev_b32 v%d, 1, v%d" % (T + 15, T + 6))
        e("v_lshl_add_u32 v%d, v%d, 12, v%d" % (T + 15, T + 7, T + 15))
        e("s_lshl_b32 s%d, s%d, 6" % (sT0, sTile0))
        e("s_lshl_b32 s%d, s%d, 6" % (sT1, sTileS))
        for p, r in enumerate((vFlag, vFlag + 1, vGate)):
            g.vm("buffer_load_ushort v%d, v%d, s[%d:%d], s%d offen offset:%d" % (r, T + 15, SRD_OUT, SRD_OUT + 3, sT0, 128 * p), "bias")
        g.vm("buffer_load_ushort v%d, v%d, s[%d:%d], s%d offen" % (vGate + 1, T + 15, SRD_OUT, SRD_OUT + 3, sT1), "bias")
    def b2():
        for i in range(16, 24): e("v_mov_b32 v%d, %s" % (T + i, "0x3f80" if i == 16 else "0"))
    def b3():
        e("s_lshl_b32 s%d, s%d, 11" % (sTile0, sTile0))
        e("s_add_u32 s%d, s%d, s%d" % (sTile0, sTile0, sActBase))
        e("s_lshl_b32 s%d, s%d, 11" % (sTileS, sTileS))
        e("s_add_u32 s%d, s%d, s%d" % (sTileS, sTileS, sActBase))
    b0(); b1()
    def p2page(u):
        e("s_add_u32 s%d, s%d, 256" % (sT0, sWc + u))
        dma(SRD_W, vWd, sT0, (sLdsW, QR + u * 8192), "p2")
    extra = {0: [b2, P[0], b3], 1: [nonce_issue, P[1], P[2]], 2: [P[3], P[4]], 3: [P[5], P[6], lambda: srd(SRD_OUT, sOUT, 2048 * 896)],
             4: [P[7], nonce_get], 5: [lambda u=u: p2page(u) for u in range(4)], 6: [lambda u=u: p2page(u) for u in range(4, 7)]}
    if cfg.prio: cond("s_cmp_lt_u32 s%d, 4" % sWave, lambda: e("s_setprio 1"))
    stream(False, extra)
    g.stamp(2)
    O = 32 * 1024
    q0 = list(g.q)
    e("s_cmp_lg_u32 s%d, 0" % sHalf)
    e("s_cbranch_scc1 L_ffnB")
    e("s_nop 3")
    epi_mish(ACC[0], sTile0, O, "st0", fills=parks((0, 1)), pk=True)
    g.stamp(34)
    g.wait("p2"); barrier(); g.stamp(3)
    def f1():
        g.wait("st0"); barrier()
        only_wave(0, lambda: write_flag("FR", 1))
        g.lazy(4)
    fill = {}
    spread(fill, parks((4, 5)), 2, 16)
    fill.setdefault(cfg.f1pos, []).append(f1)
    tile(ACC[0], vTr2, 128, QR, bias=vGate, fill=fill)
    g.stamp(35)
    epi_mish(ACC[1], sTile0, O + 4096, "st1", pk=cfg.pk1)
    g.stamp(36)
    barrier(); g.stamp(5)
    tile(ACC[1], vTrS, 64, 0, bias=vGate + 1)
    g.stamp(37)
    g.wait("st1"); barrier(); g.stamp(6)
    only_wave(0, lambda: write_flag("FR", 2))
    epi_mish(ACC[0], sTile0, O + 8192, "st2", pk=True)
    epi_mish(ACC[1], sTileS, O, "st3", pk=True)
    g.stamp(38)
    e("s_branch L_cons")
    g.lab("L_ffnB"); g.q = q0
    e("s_nop 3")
    def spage(u): dma(SRD_W, vSd, sWc + u, (sLdsW, SR + u * 4096 - 4096), "S")
    epi_mish(ACC[0], sTile0, O, "st0", fills=[lambda u=u: spage(u) for u in range(7)] + parks((0, 1)), pk=True)
    g.stamp(34)
    g.wait("p2"); barrier(); g.stamp(3)
    epi_mish(ACC[1], sTile0, O + 4096, "st1", fills=parks((4, 5)) + [producer_setup], pk=cfg.pk1)
    g.stamp(35)
    g.wait("st0"); barrier(); g.stamp(4)
    tile(ACC[0], vTr2, 128, QR, bias=vGate, fill={cfg.pollpos: [lambda: g.vm(poll_instr(sSlot), "poll")]})
    g.stamp(36)
    g.wait("S", must=False); barrier(); g.stamp(5)
    g.wait("poll")
    poll_check(sSlot, 1, 0xff00)
    g.stamp(7)
    for n in range(3): p2_issue_A(n)
    epi_mish(ACC[0], sTile0, O + 8192, "st2", pk=cfg.pk1)
    g.stamp(37)
    barrier(); g.stamp(6)
    p2_issue_W(2); p2_issue_W(3)
    g.wait("A0")
    producers(False)

def pq_pads():
    e("s_mov_b32 exec_lo, 0")
    e("v_mov_b32 v%d, 0" % (PK + 6)); e("v_mov_b32 v%d, 0" % (PK + 7))
    e("s_mov_b64 exec, -1")

def o_compute():
    T = TMP; PV = TMP + 16
    e("s_lshl_b32 s%d, s%d, 12" % (sT0, sHalf))
    e("s_add_u32 s%d, s%d, %d" % (sT0, sT0, MISC))
    e("v_lshl_add_u32 v%d, v%d, 2, s%d" % (PV, vLane, sT0))
    for i in range(8):
        e("ds_read2st64_b32 %s, v%d offset0:%d offset1:%d" % (R(T + 2 * i, 2), PV, 2 * i, 2 * i + 1))
        if i == 2: e("s_waitcnt lgkmcnt(3)")
    e("s_waitcnt lgkmcnt(0)")
    for i in range(8):
        e("v_cvt_pk_bf16_f32 v%d, v%d, v%d" % (PV + i, T + 2 * i, T + 2 * i + 1))
    e("s_nop 1")
    mfma(R(T, 16), R(PV), R(PK), "0")
    mfma(R(T, 16), R(PV + 4), R(PK + 4), R(T, 16))
    e("s_lshl_b32 s%d, s%d, 2" % (sT1, sRB))
    e("s_add_u32 s%d, s%d, s%d" % (sT1, sT1, sTG))
    e("s_mul_i32 s%d, s%d, %d" % (sT1, sT1, TG_STRIDE))
    e("s_lshl_b32 s%d, s%d, 1" % (sT0, sJ))
    e("s_add_u32 s%d, s%d, s%d" % (sT0, sT0, sHalf))
    e("s_lshl_b32 s%d, s%d, 11" % (sT0, sT0))
    e("s_add_u32 s%d, s%d, s%d" % (sT0, sT0, sT1))
    e("s_nop 5")
    e("v_mov_b32 v%d, v%d" % (PV, T + 12))
    e("v_mov_b32 v%d, v%d" % (PV + 1, T + 12))
    e("s_nop 1")
    e("v_permlane32_swap_b32 v%d, v%d" % (PV, PV + 1))
    e("s_nop 1")
    e("v_add_f32 v%d, s%d, v%d" % (PV + 1, sEps, PV + 1))
    e("v_rcp_f32 v%d, v%d" % (PV + 1, PV + 1))
    e("s_nop 0")
    for i in range(16):
        e("v_mul_f32 v%d, v%d, v%d" % (T + i, T + i, PV + 1))
    for i in range(8):
        e("v_cvt_pk_bf16_f32 v%d, v%d, v%d" % (PK + i, T + 2 * i, T + 2 * i + 1))
    pq_pads()
    e("buffer_store_dwordx4 %s, v%d, s[%d:%d], s%d offen sc0 sc1" % (R(PK), vL16, SRD_WS, SRD_WS + 3, sT0))
    e("buffer_store_dwordx4 %s, v%d, s[%d:%d], s%d offen offset:1024 sc0 sc1" % (R(PK + 4), vL16, SRD_WS, SRD_WS + 3, sT0))

def kv_load():
    e("s_lshl_b32 s%d, s%d, 13" % (sT0, sJ))
    e("s_lshl_b32 s%d, s%d, 11" % (sT1, sTG))
    e("s_add_u32 s%d, s%d, s%d" % (sT0, sT0, sT1))
    e("s_add_u32 s%d, s%d, %d" % (sT0, sT0, WS_KV))
    dma(SRD_WS, vL16, sT0, (sT1, MISC), "kvl", sc="sc1")
    dma(SRD_WS, vL16, sT0, None, "kvl", imm=1024, sc="sc1")

def q_dma(u):
    e("s_add_u32 m0, s%d, %d" % (sLdsW, QR + u * 8192))
    e("s_mov_b32 exec_lo, 0xf7f77f7f"); e("s_mov_b32 exec_hi, 0xf7f77f7f")
    g.vm("buffer_load_dwordx4 v%d, s[%d:%d], s%d offen lds" % (vWd, SRD_W, SRD_W + 3, sWc + u), "Q%d" % u)
    e("s_mov_b64 exec, -1")

def att_path():
    T = TMP
    for f in chunk_dmas(0, True): f()
    setup_min(True)
    for f in chunk_dmas(1, True): f()
    P = setup_pieces()
    e("s_add_u32 s%d, s%d, s%d" % (sT0, sWave, sRot))
    e("s_cmp_ge_u32 s%d, 7" % sT0)
    e("s_cselect_b32 s%d, 7, 0" % sT1)
    e("s_sub_u32 s%d, s%d, s%d" % (sT0, sT0, sT1))
    e("s_lshl_b32 s%d, s%d, 7" % (sT0, sT0))
    e("v_lshl_add_u32 v%d, v%d, 1, s%d" % (T + 15, vLane, sT0))
    g.vm("global_load_ushort v%d, v%d, s[%d:%d]" % (vGate, T + 15, sGATE, sGATE + 1), "gate")
    def zero_kv():
        for i in range(4): e("v_mov_b32 v%d, 0" % (T + 16 + i))
        e("s_lshl_b32 s%d, s%d, 13" % (sT0, sJ))
        e("s_lshl_b32 s%d, s%d, 9" % (sT1, sRB))
        e("s_add_u32 s%d, s%d, s%d" % (sT0, sT0, sT1))
        e("s_add_u32 s%d, s%d, %d" % (sT0, sT0, WS_KV))
        e("s_mov_b32 exec_hi, 0")
        e("buffer_store_dwordx4 %s, v%d, s[%d:%d], s%d offen sc0 sc1" % (R(T + 16), vL16, SRD_WS, SRD_WS + 3, sT0))
        e("s_mov_b64 exec, -1")
    def a0():
        e("v_cmp_eq_u32 vcc, 28, v%d" % (T + 6))
        e("v_mov_b32 v%d, 0x3f803f80" % (T + 20))
        e("v_mov_b32 v%d, 0" % (vGate + 1))
        e("v_cndmask_b32 v%d, 0, v%d, vcc" % (vVpad, T + 20))
        e("v_bfe_u32 v%d, v%d, 1, 1" % (T + 21, vLane))
        e("v_lshlrev_b32 v%d, 6, v%d" % (T + 21, T + 21))
        e("v_xor_b32 v%d, 0x70, v%d" % (T + 21, T + 21))
        e("v_lshl_add_u32 v%d, v%d, 7, v%d" % (T + 21, vLane, T + 21))
        e("s_lshl_b32 s%d, s%d, 13" % (sT0, sWave))
        e("v_add_u32 v%d, s%d, v%d" % (T + 21, sT0, T + 21))
    def gate_write():
        cond("s_cmp_eq_u32 s%d, 7" % sWave, lambda: e("ds_write_b64 v%d, %s offset:%d" % (T + 21, R(vGate, 2), QR)))
    def zflag():
        nonce_get()
        only_wave(1, lambda: write_flag("FH", 1))
    extra = {0: [P[0], lambda: only_wave(1, zero_kv), a0], 1: [nonce_issue, P[1], P[2]], 2: [gate_write, P[3], P[4]],
             3: [P[5], P[6], lambda: srd(SRD_OUT, sOUT, 2048 * 896)], 4: [P[7], zflag],
             5: [lambda p=p: q_dma(p) for p in range(4)],
             6: [lambda: g.vm(poll_instr(sSlotH), "poll")] + [lambda p=p: q_dma(p) for p in range(4, 7)]}
    if cfg.prio: cond("s_cmp_lt_u32 s%d, 4" % sWave, lambda: e("s_setprio 1"))
    stream(True, extra)
    g.stamp(2)
    PV = 64
    e("s_nop 7")
    epi_phi(ACC[0], PK)
    for i in range(8):
        e("v_cvt_pk_bf16_f32 v%d, v%d, v%d" % (PV + i, ACC[1] + 2 * i, ACC[1] + 2 * i + 1))
    e("s_mov_b32 exec_lo, 0xf0000000"); e("s_mov_b32 exec_hi, 0xf0000000")
    for i in range(8):
        e("v_mov_b32 v%d, 0" % (PK + i)); e("v_mov_b32 v%d, v%d" % (PV + i, vVpad))
    e("s_mov_b64 exec, -1")
    e("s_nop 1")
    mfma(R(ACC[0], 16), R(PK), R(PV), "0")
    mfma(R(ACC[0], 16), R(PK + 4), R(PV + 4), R(ACC[0], 16))
    e("s_lshl_b32 s%d, s%d, 12" % (sT0, sWave))
    e("s_add_u32 s%d, s%d, %d" % (sT0, sT0, KVSCR))
    e("v_add_u32 v%d, s%d, v%d" % (T, sT0, vL16))
    park(0, 0); park(0, 1)
    e("s_nop 4")
    for qd in range(4):
        e("ds_write_b128 v%d, %s offset:%d" % (T, R(ACC[0] + 4 * qd), qd * 1024))
    g.wait("Q2", lgkm0=True)
    barrier(); g.stamp(3)
    e("s_lshl_b32 s%d, s%d, 14" % (sT0, sHalf))
    e("s_lshl_b32 s%d, s%d, 10" % (sT1, sTG))
    e("s_add_u32 s%d, s%d, s%d" % (sT0, sT0, sT1))
    e("s_add_u32 s%d, s%d, %d" % (sT0, sT0, KVSCR))
    e("v_add_u32 v%d, s%d, v%d" % (T + 16, sT0, vL16))
    for p in range(4):
        e("ds_read_b128 %s, v%d offset:%d" % (R(T + 4 * p), T + 16, p * 4096))
    g.wait("poll")
    poll_check(sSlotH, 1, 0xffff)
    e("s_waitcnt lgkmcnt(0)")
    for i in range(4):
        e("v_add_f32 v%d, v%d, v%d" % (T + i, T + i, T + 4 + i))
        e("v_add_f32 v%d, v%d, v%d" % (T + 8 + i, T + 8 + i, T + 12 + i))
    for i in range(4):
        e("v_add_f32 v%d, v%d, v%d" % (T + i, T + i, T + 8 + i))
    e("s_lshl_b32 s%d, s%d, 13" % (sT0, sJ))
    e("s_add_u32 s%d, s%d, s%d" % (sT0, sT0, sLdsW))
    e("s_add_u32 s%d, s%d, %d" % (sT0, sT0, WS_KV))
    e("v_lshlrev_b32 v%d, 2, v%d" % (T + 17, vLane))
    for i in range(4):
        g.vm("buffer_atomic_add_f32 v%d, v%d, s[%d:%d], s%d offen offset:%d" % (T + i, T + 17, SRD_WS, SRD_WS + 3, sT0, i * 256), "atom")
    def k2():
        g.wait("Q6", must=False); barrier(); g.lazy(4)
    fill = {}
    spread(fill, parks((1, 4, 5)), 0, 8)
    spread(fill, parks((2, 3)), 9, 26)
    tile(ACC[1], vTr2, 128, QR, bnd={12: k2}, fill=fill)
    g.wait("atom")
    barrier(); g.stamp(5)
    only_wave(0, lambda: write_flag("FH", 2))
    q1 = list(g.q)
    e("s_cmp_lg_u32 s%d, 0" % sHalf)
    e("s_cbranch_scc1 L_attB")
    e("s_nop 7")
    epi_phi(ACC[1], PK)
    pq_pads()
    e("s_cmp_ge_u32 s2, 224"); e("s_cbranch_scc1 L_idleA")
    g.wait_all()
    e("s_branch L_cons")
    g.lab("L_attB"); g.q = q1
    producer_setup()
    def a_first():
        e(poll_instr(sSlot))
        e("s_waitcnt vmcnt(0)")
        poll_check(sSlot, 1, 0xff00)
        g.stamp(6)
        for n in range(3): p2_issue_A(n)
    cond("s_cmp_ge_u32 s2, 224", a_first)
    def gout():
        e("v_mul_f32 v%d, s%d, v%d" % (T, sLog2e, ACC[1] + 12))
        e("v_exp_f32_e64 v%d, -v%d" % (T, T))
        e("s_nop 0")
        e("v_add_f32 v%d, 1.0, v%d" % (T, T))
        e("v_rcp_f32 v%d, v%d" % (T, T))
        e("v_lshlrev_b32 v%d, 2, v%d" % (T + 1, vLane))
        e("s_lshl_b32 s%d, s%d, 2" % (sT0, sRB))
        e("s_add_u32 s%d, s%d, s%d" % (sT0, sT0, sTG))
        e("s_lshl_b32 s%d, s%d, 7" % (sT0, sT0))
        e("s_add_u32 s%d, s%d, %d" % (sT0, sT0, WS_G - 128))
        e("s_mov_b32 exec_lo, 0")
        e("buffer_store_dword v%d, v%d, s[%d:%d], s%d offen sc0 sc1" % (T, T + 1, SRD_WS, SRD_WS + 3, sT0))
        e("s_mov_b64 exec, -1")
        e("s_nop 0")
    cond("s_cmp_lg_u32 s%d, 0" % sJ, gout)
    epi_phi(ACC[1], PK)
    pq_pads()
    e("s_cmp_ge_u32 s2, 224"); e("s_cbranch_scc1 L_idleB")
    e("s_waitcnt vmcnt(8)")
    g.q = ["A1"] * 4 + ["A2"] * 4
    producers(True)
    g.lab("L_idleB")
    e(poll_instr(sSlotH))
    e("s_waitcnt vmcnt(0)")
    poll_check(sSlotH, 2, 0xffff)
    kv_load()
    g.lab("L_idleA")
    e("s_waitcnt vmcnt(0)")
    barrier()
    o_compute()
    e("s_waitcnt vmcnt(0)")
    barrier()
    only_wave(0, lambda: write_flag("FR", 3))
    e("s_branch L_fin")

def producers(att):
    g.lq = []
    barrier(); g.stamp(8)
    for n in range(1, 18):
        g.wait(["A%d" % n, "W%d" % n] + (["st2"] if n == 1 else []))
        g.stamp(16 + n)
        barrier()
        if att and n == 3: kv_load()
        if att and n == 5:
            o_compute()
            g.q += ["so", "so"]
        if n + 2 <= 17: p2_issue_A(n + 2)
        if n + 5 <= 17: p2_issue_W(n + 5)
        g.stamp(40 + n)
    g.stamp(9)
    e("s_branch L_fin")

def phase2():
    g.lab("L_cons"); g.q = []; g.lq = []
    accA, accB = ACC[0], ACC[1]
    items = []; bnd = {}; fill = {}
    gates = {2: (2, 0xff00), 6: (3, 0xff00), 12: (3, 0xff)}
    for n in range(18):
        def boundary(n=n):
            if n in gates:
                def chk():
                    e("s_waitcnt vmcnt(0)")
                    poll_check(sSlot, gates[n][0], gates[n][1])
                only_wave(0, chk)
            if n == 3:
                def chk():
                    e("s_waitcnt vmcnt(0)")
                    poll_check(sSlotH, 2, 0xffff)
                only_att(lambda: only_wave(1, chk))
            if n == 7: e("s_waitcnt vmcnt(0)")
            if n == 1:
                e("s_waitcnt vmcnt(1)")
                cond("s_cmp_eq_u32 s%d, 0" % sWave, lambda: e("s_waitcnt vmcnt(0)"))
            if n: g.lwait0()
            barrier()
            g.lazy(16 + n if n else 8)
            if n == 1: only_ffn(lambda: only_wave(0, lambda: write_flag("FR", 3)))
            if n == 7: only_att(lambda: only_wave(0, lambda: write_flag("FR", 3)))
            if n + 2 in gates: only_wave(0, lambda: e(poll_instr(sSlot)))
            if n == 1: only_att(lambda: only_wave(1, lambda: e(poll_instr(sSlotH))))
        bnd[len(items)] = boundary
        for s in range(8):
            k = len(items); w = 8 * (k % 8)
            def rd(k=k, w=w, n=n, s=s):
                wt = WT(n)
                a, o = (vWlo, wt - 4 * 16384) if wt < 7 * 16384 else (vWhi, wt - 7 * 16384)
                o += (s // 4) * 8192 + (s % 4) * 2048
                g.ds("ds_read_b64_tr_b16 %s, v%d offset:%d" % (R(w, 2, "a"), a, o), k)
                g.ds("ds_read_b64_tr_b16 %s, v%d offset:%d" % (R(w + 2, 2, "a"), a, o + 1024), k)
                g.ds("ds_read_b128 %s, v%d offset:%d" % (R(w + 4, 4, "a"), vAr, AT(n) + (s // 4) * 8192 + (s % 4) * 1024), k)
            def mf(k=k, w=w, n=n, s=s):
                g.lwait(k)
                acc = accB if n < 14 else accA
                mfma(R(acc, 16), R(w, 4, "a"), R(w + 4, 4, "a"), "0" if (n in (0, 14) and s == 0) else R(acc, 16))
            items.append((rd, mf))
    fill[5 * 8] = [lambda: only_att(o_compute)]
    fill[13 * 8] = [lambda: e("buffer_load_dword v%d, v%d, s[%d:%d], 0 offen sc1" % (vG, vG, SRD_WS, SRD_WS + 3))]
    pipe(items, 4, bnd, fill, cfg.bd2)
    g.stamp(9)
    e("s_waitcnt vmcnt(0)")
    mfma_fence()
    WF = TMP
    for i in range(16):
        e("v_sub_f32 v%d, v%d, v%d" % (accA + i, accA + i, accB + i))
    for i in range(16):
        e("v_fma_f32 v%d, v%d, v%d, v%d" % (accA + i, accA + i, vG, accB + i))
    for i in range(8):
        e("v_cvt_pk_bf16_f32 v%d, v%d, v%d" % (WF + i, accA + 2 * i, accA + 2 * i + 1))
    e("s_nop 1")
    for qq in range(2):
        e("v_permlane32_swap_b32 v%d, v%d" % (WF + 4 * qq, WF + 4 * qq + 2))
        e("v_permlane32_swap_b32 v%d, v%d" % (WF + 4 * qq + 1, WF + 4 * qq + 3))
    e("s_nop 1")
    for qq in range(2):
        e("buffer_store_dwordx4 %s, v%d, s[%d:%d], s%d offen offset:%d" % (R(WF + 4 * qq), vOut, SRD_OUT, SRD_OUT + 3, sOutB, qq * 32))

def build():
    T = TMP
    e("s_cmp_ge_u32 s2, 256")
    e("s_cbranch_scc1 L_end")
    e("s_load_dwordx16 s[4:19], s[0:1], 0")
    e("s_load_dwordx4 s[20:23], s[0:1], 64")
    e("s_load_dwordx2 s[24:25], s[0:1], 80")
    e("s_memrealtime s[%d:%d]" % (sNonce, sNonce + 1))
    if cfg.stamps:
        e("s_memrealtime s[98:99]")
        e("s_memtime s[%d:%d]" % (sMask, sMask + 1))
    e("v_lshrrev_b32 v%d, 6, v0" % T)
    e("v_and_b32 v%d, 63, v0" % vLane)
    e("v_readfirstlane_b32 s%d, v%d" % (sWave, T))
    e("v_mov_b32 v%d, 0" % vZero)
    e("s_lshr_b32 s%d, s2, 3" % sT0)
    e("s_and_b32 s%d, s2, 1" % sT1)
    e("s_lshl_b32 s%d, s%d, 3" % (sT1, sT1))
    e("s_and_b32 s%d, s%d, 7" % (sT2, sT0))
    e("s_add_u32 s%d, s%d, s%d" % (sRB, sT1, sT2))
    e("s_lshr_b32 s%d, s%d, 3" % (sT3, sT0))
    e("s_and_b32 s%d, s2, 6" % sT1)
    e("s_and_b32 s%d, s%d, 1" % (sT4, sT3))
    e("s_lshl_b32 s%d, s%d, 1" % (sT5, sT3))
    e("s_add_u32 s%d, s%d, s%d" % (sRot, sT2, sT5))
    e("s_cmp_ge_u32 s%d, 7" % sRot)
    e("s_cselect_b32 s%d, 7, 0" % sT5)
    e("s_sub_u32 s%d, s%d, s%d" % (sRot, sRot, sT5))
    e("v_lshrrev_b32 v%d, 3, v%d" % (T, vLane))
    e("v_and_b32 v%d, 7, v%d" % (T + 1, vLane))
    e("v_lshrrev_b32 v%d, 4, v%d" % (T + 2, vLane))
    e("v_lshl_add_u32 v%d, s%d, 4, v%d" % (T + 3, sWave, T))
    e("v_mul_u32_u24 v%d, 896, v%d" % (T + 3, T + 3))
    e("v_xor_b32 v%d, v%d, v%d" % (T + 4, T + 1, T + 2))
    e("v_lshl_add_u32 v%d, v%d, 4, v%d" % (vXd0, T + 4, T + 3))
    e("v_xor_b32 v%d, 4, v%d" % (T + 4, T + 4))
    e("v_lshl_add_u32 v%d, v%d, 4, v%d" % (vXd1, T + 4, T + 3))
    e("v_add_u32 v%d, %d, v%d" % (vXd1, 8 * 896 - 1024, vXd1))
    e("v_and_b32 v%d, 1, v%d" % (T + 5, T + 2))
    e("v_lshlrev_b32 v%d, 2, v%d" % (T + 5, T + 5))
    e("v_xor_b32 v%d, v%d, v%d" % (T + 5, T + 5, T + 1))
    e("s_cmp_ge_u32 s%d, 2" % sT3)
    e("s_cbranch_scc1 L_att")
    e("s_add_u32 s%d, s%d, s%d" % (sJ, sT1, sT4))
    e("s_add_u32 s%d, s%d, 8" % (sRole, sJ))
    first_part(False)
    if cfg.stamps: e("v_writelane_b32 v%d, s%d, 0" % (vSt, sMask))
    g.stamp(15)
    publish_nonce()
    g.q = []; g.lq = []
    ffn_path()
    g.lab("L_att"); g.q = []; g.lq = []
    e("s_cmp_eq_u32 s%d, 6" % sT1)
    e("s_cselect_b32 s%d, 1, 0" % sT5)
    e("s_xor_b32 s%d, s%d, s%d" % (sT4, sT4, sT5))
    e("s_add_u32 s%d, s%d, s%d" % (sJ, sT1, sT4))
    e("s_mov_b32 s%d, s%d" % (sRole, sJ))
    first_part(True)
    if cfg.stamps: e("v_writelane_b32 v%d, s%d, 0" % (vSt, sMask))
    att_path()
    phase2()
    g.lab("L_fin")
    if cfg.stamps:
        e("s_waitcnt vmcnt(0)")
        g.stamp(10)
        e("s_lshl_b32 s%d, s2, 3" % sT0)
        e("s_add_u32 s%d, s%d, s%d" % (sT0, sT0, sWave))
        e("s_lshl_b32 s%d, s%d, 8" % (sT0, sT0))
        e("s_add_u32 s%d, s%d, %d" % (sMask, sWS, WS_STAMP))
        e("s_addc_u32 s%d, s%d, 0" % (sMask + 1, sWS + 1))
        e("v_lshl_add_u32 v%d, v%d, 2, s%d" % (TMP, vLane, sT0))
        e("v_writelane_b32 v%d, s98, 12" % vSt)
        e("s_getreg_b32 s%d, hwreg(HW_REG_HW_ID)" % sT3)
        e("v_writelane_b32 v%d, s%d, 14" % (vSt, sT3))
        e("s_getreg_b32 s%d, hwreg(HW_REG_XCC_ID)" % sT3)
        e("v_writelane_b32 v%d, s%d, 13" % (vSt, sT3))
        e("s_memrealtime s[%d:%d]" % (sStamp, sStamp + 1))
        e("s_waitcnt lgkmcnt(0)")
        e("v_writelane_b32 v%d, s%d, 11" % (vSt, sStamp))
        e("global_store_dword v%d, v%d, s[%d:%d]" % (TMP, vSt, sMask, sMask + 1))
        if cfg.dbgwg >= 0:
            e("s_cmp_lg_u32 s2, %d" % cfg.dbgwg); e("s_cbranch_scc1 L_end")
            e("s_cmp_lg_u32 s%d, 0" % sWave); e("s_cbranch_scc1 L_end")
            e("v_lshlrev_b32 v%d, 2, v%d" % (TMP, vLane))
            e("s_mov_b64 exec, 0x1fff")
            e("global_store_dword v%d, v%d, s[%d:%d] offset:8" % (TMP, vSt, sDBG, sDBG + 1))
    g.lab("L_end")
    e("s_endpgm")

def main():
    out = sys.argv[1]
    for a in sys.argv[2:]:
        k, v = a.split("=")
        assert hasattr(cfg, k), k
        setattr(cfg, k, int(v))
    build()
    K = NAME + "_kernel"
    hdr = "; gated mix: linear attention block + mish FFN, single persistent launch (written with my own generator script)\n"
    hdr += "; @launch grid=(256,1,1) block=(512,1,1) lds=%d\n" % LDS_BYTES
    hdr += '.amdgcn_target "amdgcn-amd-amdhsa--gfx950"\n.text\n.globl %s\n.p2align 8\n.type %s,@function\n%s:\n' % (K, K, K)
    ftr = '''.section .rodata,"a"
.p2align 6
.amdhsa_kernel %s
  .amdhsa_next_free_vgpr %d
  .amdhsa_next_free_sgpr 102
  .amdhsa_accum_offset %d
  .amdhsa_group_segment_fixed_size 0
  .amdhsa_kernarg_size 88
  .amdhsa_user_sgpr_count 2
  .amdhsa_user_sgpr_kernarg_segment_ptr 1
  .amdhsa_system_sgpr_workgroup_id_x 1
.end_amdhsa_kernel
''' % (K, NVG + NAG, NVG)
    open(out, "w").write(hdr + "\n".join(g.L) + "\n" + ftr)
main()
```

```python
import sys
NAME = "gated_mix__linear_attn_block__dense_activation_mish__prompt"

class Cfg:
    stamps = 0
    spin_limit = 1 << 20
    dbgwg = -1
    bd1 = 0
    bd2 = 1
    prio = 0
    pk1 = 0
    f1pos = 24
    pollpos = 18
    rot1 = 1
    rot2 = 1
    c0bar = 0
    spf = 1
    ksplit = 0
    gs2 = 1
    gs6 = 2
    gs12 = 2
    qearly = 0
    f3 = 2
    td = 4
    pk0 = 1
    sspan = 28
    ppos = 5
    apk = 0
cfg = Cfg()

TG_STRIDE = 144 * 1024
WS_KV = 0x1000000
WS_G = WS_KV + 0x10000
WS_FH = WS_G + 0x2000
WS_FR = WS_FH + 0x800
WS_BYTES = 0x1100000
WS_STAMP = 0x8000000

AS = [65536, 131072, 98304]
QR = 0
MISC = 57344
KVSCR = 98304
SR = 98304
def WT(n): return [9, 8, 5, 4, 7, 6][n % 6] * 16384
def AT(n): return (n % 3) * 16384
LDS_BYTES = 163840

sX, sWQKV, sWO, sW1, sB1, sW2, sGATE, sOUT, sDBG, sWS = 4, 6, 8, 12, 14, 16, 18, 20, 22, 24
sLdsW, sLdsX = 10, 11
sL2 = 26
sLog2e = 26
sEp = 86
sEps = 86
SRD_X, SRD_W, SRD_W2, SRD_WO, SRD_WS, SRD_OUT = 28, 32, 36, 40, 44, 48
sWave, sRB, sJ, sRot, sTB, sCB, sRole, sTG = 52, 53, 54, 55, 56, 57, 58, 59
sNonce = 60
sT0, sT1, sT2, sT3, sT4, sT5 = 62, 63, 64, 65, 66, 67
sXc = 68
sWc = 75
sActBase, sSlot, sCnt, sRot2 = 82, 83, 84, 85
sMask = 86
sPark, sSlotH, sStage, sP2, sHalf = 88, 89, 91, 92, 93
sOutB = 90
sStamp = 94
sW8, sTileP = 96, 97
sTile0, sTileS = 100, 101
sWbase, sSbase = sXc, sXc + 1
vLane, vXd0, vXd1, vWd, vSd = 1, 2, 3, 4, 5
vVpad = 5
vXr = 6
vTr, vTr2, vL16, vFl = 10, 11, 12, 13
vGate = 14
vPoll = 16
vW2d = 18
vZero = 22
vSt = 23
vFlag = 24
vAr, vWlo, vWhi, vOut, vG, vTrS = 26, 27, 28, 29, 30, 31
ACC = [32, 48, 64, 80]
TMP = 96
PK = 120
ACC2 = 128
vTrX = 0
NVG = 144
NAG = 112

class Gen:
    def __init__(self):
        self.L = []; self.q = []; self.lq = []; self.nlab = 0; self.pend = None
    def e(self, s): self.L.append("  " + s)
    def lab(self, s): self.L.append(s + ":")
    def newlab(self, p="L"):
        self.nlab += 1
        return "%s_%d" % (p, self.nlab)
    def vm(self, s, tag):
        self.e(s); self.q.append(tag)
    def vcount(self, tags):
        if isinstance(tags, str): tags = [tags]
        last = -1
        for i, t in enumerate(self.q):
            if t in tags: last = i
        if last < 0: return None
        n = len(self.q) - 1 - last
        assert n <= 63
        self.q = self.q[last + 1:]
        return n
    def wait(self, tags, lgkm0=False, must=True):
        n = self.vcount(tags)
        assert n is not None or not must, ("tag not in queue", tags, self.q)
        s = []
        if n is not None: s.append("vmcnt(%d)" % n)
        if lgkm0: s.append("lgkmcnt(0)"); self.lq = []
        if s: self.e("s_waitcnt " + " ".join(s))
        if lgkm0: self.flush()
    def wait_all(self, lgkm0=False):
        self.e("s_waitcnt vmcnt(0)" + (" lgkmcnt(0)" if lgkm0 else "")); self.q = []
        if lgkm0: self.lq = []
    def ds(self, s, tag):
        self.e(s); self.lq.append(tag)
        assert len(self.lq) <= 15, self.lq
    def lwait(self, tag):
        last = -1
        for i, t in enumerate(self.lq):
            if t == tag: last = i
        if last < 0: return
        self.e("s_waitcnt lgkmcnt(%d)" % (len(self.lq) - 1 - last))
        self.lq = self.lq[last + 1:]
    def lwait0(self):
        self.e("s_waitcnt lgkmcnt(0)"); self.lq = []
        self.flush()
    def lazy(self, idx):
        if cfg.stamps != 1: return
        assert self.pend is None
        self.e("s_memtime s[0:1]")
        self.pend = idx
    def flush(self):
        if self.pend is not None:
            self.e("v_writelane_b32 v%d, s0, %d" % (vSt, self.pend)); self.pend = None
    def stamp(self, idx):
        if cfg.stamps != 1: return
        self.e("s_memtime s[%d:%d]" % (sStamp, sStamp + 1))
        self.e("s_waitcnt lgkmcnt(0)")
        self.e("v_writelane_b32 v%d, s%d, %d" % (vSt, sStamp, idx))
        self.flush()

g = Gen()
e = g.e

def R(b, n=4, p="v"): return "%s[%d:%d]" % (p, b, b + n - 1)

def dma(srd, voff, soff, m0, tag, imm=0, sc=""):
    if m0 is not None:
        e("s_add_u32 m0, s%d, %d" % m0)
        e("s_nop 0")
    g.vm("buffer_load_dwordx4 v%d, s[%d:%d], s%d offen%s%s lds" % (voff, srd, srd + 3, soff, (" offset:%d" % imm) if imm else "", (" " + sc) if sc else ""), tag)

def mfma(d, a, b, c):
    e("v_mfma_f32_32x32x16_bf16 %s, %s, %s, %s" % (d, a, b, c))

def mfma_fence():
    e("s_nop 7"); e("s_nop 4")

def barrier(): e("s_barrier")

def pipe(items, D, bnd, fill, bd):
    N = len(items); nr = 0
    def reads(upto, i):
        nonlocal nr
        while nr <= upto and nr < N:
            if nr in bnd:
                if i is not None and i < nr - D + bd: break
                bnd[nr]()
            items[nr][0](); nr += 1
    reads(D - 1, None)
    for i in range(N):
        assert nr > i
        items[i][1]()
        reads(i + D, i)
        for f in fill.get(i, []): f()

def spread(fill, fns, lo, hi):
    n = len(fns)
    for k, f in enumerate(fns):
        pos = lo + (k * (hi - lo)) // n
        fill.setdefault(pos, []).append(f)

def run_ops(ops, fills):
    tot = sum(c for c, _ in ops); n = len(fills); k = 0; acc = 0
    for c, f in ops:
        f(); acc += c
        while k < n and acc >= (k + 0.5) * tot / n:
            fills[k](); k += 1
    while k < n: fills[k](); k += 1

def mish_ops(acc, sbase, off, tag, pk):
    T = TMP
    P = lambda r: "v[%d:%d]" % (r, r + 1)
    L = []
    def op(c, t): L.append((c, lambda: e(t)))
    for b in range(0, 16, 8):
        r = range(b, b + 8); r2 = range(b, b + 8, 2)
        if pk:
            for i in r2: op(4, "v_pk_mul_f32 %s, s[%d:%d], %s" % (P(T + i - b), sL2, sL2 + 1, P(acc + i)))
        else:
            for i in r: op(4, "v_mul_f32 v%d, s%d, v%d" % (T + i - b, sL2, acc + i))
        for i in r: op(8, "v_exp_f32 v%d, v%d" % (T + i - b, T + i - b))
        if pk:
            for i in r2: op(4, "v_pk_fma_f32 %s, %s, 0.5, 1.0 op_sel_hi:[1,0,0]" % (P(T + 8 + i - b), P(T + i - b)))
            for i in r2: op(4, "v_pk_fma_f32 %s, %s, %s, 1.0 op_sel_hi:[1,1,0]" % (P(T + i - b), P(T + i - b), P(T + 8 + i - b)))
        else:
            for i in r: op(4, "v_fma_f32 v%d, v%d, 0.5, 1.0" % (T + 8 + i - b, T + i - b))
            for i in r: op(4, "v_fma_f32 v%d, v%d, v%d, 1.0" % (T + i - b, T + i - b, T + 8 + i - b))
        for i in r: op(8, "v_rcp_f32 v%d, v%d" % (T + i - b, T + i - b))
        if pk:
            for i in r2: op(4, "v_pk_fma_f32 %s, %s, %s, %s neg_lo:[1,0,0] neg_hi:[1,0,0]" % (P(T + i - b), P(acc + i), P(T + i - b), P(acc + i)))
        else:
            for i in r: op(4, "v_fma_f32 v%d, -v%d, v%d, v%d" % (T + i - b, acc + i, T + i - b, acc + i))
        for i in range(0, 8, 2):
            op(4, "v_cvt_pk_bf16_f32 v%d, v%d, v%d" % (PK + (b + i) // 2, T + i, T + i + 1))
        def st(b=b):
            e("s_add_u32 s%d, s%d, %d" % (sT0, sbase, off + (b // 8) * 1024))
            g.vm("buffer_store_dwordx4 %s, v%d, s[%d:%d], s%d offen sc0 sc1" % (R(PK + b // 2), vL16, SRD_WS, SRD_WS + 3, sT0), tag)
        L.append((4, st))
    return L

def epi_mish(acc, sbase, off, tag, fills=(), pk=False):
    run_ops(mish_ops(acc, sbase, off, tag, pk), list(fills))

def epi_phi(acc, dst, fills=()):
    T = TMP
    fills = list(fills)
    def F():
        if fills: fills.pop(0)()
    P = lambda r: "v[%d:%d]" % (r, r + 1)
    for b in range(0, 16, 8):
        r = range(b, b + 8); r2 = range(b, b + 8, 2)
        for i in r2: e("v_pk_mul_f32 %s, s[%d:%d], %s" % (P(T + i - b), sL2, sL2 + 1, P(acc + i)))
        for i in r: e("v_exp_f32_e64 v%d, v%d clamp" % (T + i - b, T + i - b))
        F()
        for i in r: e("v_max_f32 v%d, 0, v%d" % (T + 8 + i - b, acc + i))
        for i in r2: e("v_pk_add_f32 %s, %s, %s" % (P(T + i - b), P(T + i - b), P(T + 8 + i - b)))
        for i in r2: e("v_pk_add_f32 %s, s[%d:%d], %s" % (P(T + i - b), sEp, sEp + 1, P(T + i - b)))
        for i in range(0, 8, 2):
            e("v_cvt_pk_bf16_f32 v%d, v%d, v%d" % (dst + (b + i) // 2, T + i, T + i + 1))
        F()
    while fills: F()

def write_flag(kind, stage):
    if kind == "FR": base, hi, sh, lo = WS_FR, sRB, 9, sRole
    else: base, hi, sh, lo = WS_FH, sJ, 8, sRB
    e("s_lshl_b32 s%d, s%d, %d" % (sT0, hi, sh))
    e("s_lshl_b32 s%d, s%d, 3" % (sT1, lo))
    e("s_add_u32 s%d, s%d, s%d" % (sT0, sT0, sT1))
    e("s_add_u32 s%d, s%d, %d" % (sT0, sT0, base + (stage - 1) * 128))
    e("v_mov_b32 v%d, s%d" % (vFlag, sNonce))
    e("v_mov_b32 v%d, s%d" % (vFlag + 1, sNonce + 1))
    e("s_mov_b64 exec, 1")
    e("buffer_store_dwordx2 %s, v%d, s[%d:%d], s%d offen sc0 sc1" % (R(vFlag, 2), vZero, SRD_WS, SRD_WS + 3, sT0))
    e("s_mov_b64 exec, -1")

def signal1(c):
    e("v_mov_b32 v%d, 1" % vFlag)
    e("s_mov_b64 exec, 1")
    g.ds("ds_add_rtn_u32 v%d, v%d, v%d offset:%d" % (vFlag + 1, vZero, vFlag, MISC + 4 * c), "cnt")
    e("s_mov_b64 exec, -1")
def signal2(count, kind, stage):
    g.lwait("cnt")
    e("v_readfirstlane_b32 s%d, v%d" % (sT0, vFlag + 1))
    e("s_nop 3")
    cond("s_cmp_lg_u32 s%d, %d" % (sT0, count - 1), lambda: write_flag(kind, stage))

def poll_instr(soff, stage):
    return "buffer_load_dwordx2 %s, v%d, s[%d:%d], s%d offen offset:%d sc1" % (R(vPoll, 2), vFl, SRD_WS, SRD_WS + 3, soff, (stage - 1) * 128)

def poll_test(mask):
    e("v_cmp_eq_u64 vcc, s[%d:%d], %s" % (sNonce, sNonce + 1, R(vPoll, 2)))
    e("s_and_b32 s%d, vcc_lo, %d" % (sT2, mask))
    e("s_cmp_eq_u32 s%d, %d" % (sT2, mask))

def poll_check(soff, stage, mask):
    again = g.newlab("L_poll"); ok = g.newlab("L_pok"); chk = g.newlab("L_pchk")
    e("s_mov_b32 s%d, %d" % (sCnt, cfg.spin_limit))
    e("s_branch %s" % chk)
    g.lab(again)
    e("s_sleep 1")
    e(poll_instr(soff, stage))
    e("s_waitcnt vmcnt(0)")
    g.lab(chk)
    poll_test(mask)
    e("s_cbranch_scc1 %s" % ok)
    e("s_sub_u32 s%d, s%d, 1" % (sCnt, sCnt))
    e("s_cmp_lg_u32 s%d, 0" % sCnt)
    e("s_cbranch_scc1 %s" % again)
    g.lab(ok)

def nonce_issue():
    g.vm("global_load_dwordx2 %s, v%d, s[%d:%d] sc1" % (R(vPoll, 2), vZero, sDBG, sDBG + 1), "nonce")

def nonce_get():
    again = g.newlab("L_non"); ok = g.newlab("L_nok"); chk = g.newlab("L_nchk")
    e("s_mov_b32 s%d, %d" % (sCnt, cfg.spin_limit))
    e("s_branch %s" % chk)
    g.lab(again)
    e("s_sleep 1")
    e("global_load_dwordx2 %s, v%d, s[%d:%d] sc1" % (R(vPoll, 2), vZero, sDBG, sDBG + 1))
    e("s_waitcnt vmcnt(0)")
    g.lab(chk)
    e("v_readfirstlane_b32 s%d, v%d" % (sNonce, vPoll))
    e("v_readfirstlane_b32 s%d, v%d" % (sNonce + 1, vPoll + 1))
    e("s_nop 3")
    e("s_cmp_lg_u32 s%d, 0" % (sNonce + 1))
    e("s_cbranch_scc1 %s" % ok)
    e("s_sub_u32 s%d, s%d, 1" % (sCnt, sCnt))
    e("s_cmp_lg_u32 s%d, 0" % sCnt)
    e("s_cbranch_scc1 %s" % again)
    g.lab(ok)

def cond(cmp, fn):
    skip = g.newlab("L_skip")
    e(cmp)
    e("s_cbranch_scc1 %s" % skip)
    q, lq = list(g.q), list(g.lq)
    fn()
    g.q, g.lq = q, lq
    g.lab(skip)
def only_wave(w, fn): cond("s_cmp_lg_u32 s%d, %d" % (sWave, w), fn)
def only_att(fn): cond("s_cmp_ge_u32 s%d, 8" % sRole, fn)
def only_ffn(fn): cond("s_cmp_lt_u32 s%d, 8" % sRole, fn)

def chunk_id(n, sreg, add):
    if n < 4: base, cnt, kind = 0, 8, 0
    elif n < 8: base, cnt, kind = 4, 8, 1
    else: base, cnt, kind = 8, 12, 2
    e("s_add_u32 s%d, s%d, %d" % (sT2, sreg, add + 2 * (n - base)))
    if cnt == 8:
        e("s_bfe_u32 s%d, s%d, 0x20001" % (sT3, sT2))
        e("s_and_b32 s%d, s%d, 1" % (sT2, sT2))
        e("s_lshl_b32 s%d, s%d, 2" % (sT2, sT2))
        e("s_mul_i32 s%d, s%d, 7" % (sT3, sT3))
        e("s_add_u32 s%d, s%d, s%d" % (sT2, sT2, sT3))
        if kind: e("s_add_u32 s%d, s%d, 1" % (sT2, sT2))
    else:
        for _ in range(2):
            e("s_cmp_ge_u32 s%d, 12" % sT2)
            e("s_cselect_b32 s%d, 12, 0" % sT3)
            e("s_sub_u32 s%d, s%d, s%d" % (sT2, sT2, sT3))
        e("s_mul_i32 s%d, s%d, 43" % (sT3, sT2))
        e("s_lshr_b32 s%d, s%d, 7" % (sT3, sT3))
        e("s_mul_i32 s%d, s%d, 3" % (sT4, sT3))
        e("s_sub_u32 s%d, s%d, s%d" % (sT2, sT2, sT4))
        e("s_cmp_eq_u32 s%d, 2" % sT2)
        e("s_cselect_b32 s%d, 4, s%d" % (sT2, sT2))
        e("s_mul_i32 s%d, s%d, 7" % (sT3, sT3))
        e("s_add_u32 s%d, s%d, s%d" % (sT2, sT2, sT3))
        e("s_add_u32 s%d, s%d, 2" % (sT2, sT2))

def park(n, h):
    chunk_id(n, sRot2, h)
    e("s_mul_i32 s%d, s%d, %d" % (sT0, sT2, 64 * 896))
    e("s_add_u32 s%d, s%d, s%d" % (sT0, sT0, sPark))
    dma(SRD_W2, vW2d, sT0, (sLdsW, WT(n) + h * 8192), "W%d" % n)

def A_dmas(n, sD):
    def first():
        if n < 14:
            chunk_id(n, sP2, 0)
            e("s_lshl_b32 s%d, s%d, 12" % (sD, sT2))
            e("s_add_u32 s%d, s%d, %d" % (sD, sD, 32 * 1024))
        else:
            e("s_add_u32 s%d, s%d, %d" % (sT2, sP2, 2 * (n - 14)))
            e("s_and_b32 s%d, s%d, 7" % (sT2, sT2))
            e("s_lshl_b32 s%d, s%d, 12" % (sD, sT2))
        e("s_add_u32 s%d, s%d, s%d" % (sD, sD, sActBase))
    def d(i):
        if i == 0: first()
        dma(SRD_WS, vL16, sD, (sW8, AT(n)) if i == 0 else None, "A%d" % n, imm=i * 1024, sc="sc1")
    return [lambda i=i: d(i) for i in range(4)]

def W_dmas(n, sD):
    srd_ = SRD_W2 if n < 14 else SRD_WO
    def first():
        if n < 14:
            chunk_id(n, sP2, 0)
            e("s_mul_i32 s%d, s%d, %d" % (sD, sT2, 64 * 896))
            e("s_add_u32 s%d, s%d, s%d" % (sD, sD, sWbase))
        else:
            e("s_add_u32 s%d, s%d, %d" % (sT2, sP2, 2 * (n - 14)))
            e("s_and_b32 s%d, s%d, 7" % (sT2, sT2))
            e("s_mul_i32 s%d, s%d, %d" % (sD, sT2, 56 * 896))
            e("s_add_u32 s%d, s%d, s%d" % (sD, sD, sSbase))
    def d(i):
        if i == 0: first()
        dma(srd_, vW2d + i, sD, (sW8, WT(n)) if i == 0 else None, "W%d" % n, imm=i * 1024)
    return [lambda i=i: d(i) for i in range(4)]

def p2_issue_A(n):
    for f in A_dmas(n, sT0): f()
def p2_issue_W(n):
    for f in W_dmas(n, sT0): f()

def producer_setup():
    e("s_sub_u32 s%d, s%d, 4" % (sT3, sWave))
    e("s_lshr_b32 s%d, s%d, 1" % (sT1, sT3))
    e("s_add_u32 s%d, s%d, s%d" % (sP2, sRot2, sT1))
    e("s_and_b32 s%d, s%d, 1" % (sT0, sT3))
    e("s_lshl_b32 s%d, s%d, 12" % (sW8, sT3))
    e("s_lshl_b32 s%d, s%d, 7" % (sT1, sCB))
    e("s_mul_i32 s%d, s%d, %d" % (sT2, sT0, 32 * 896))
    e("s_add_u32 s%d, s%d, s%d" % (sWbase, sT1, sT2))
    e("s_mul_i32 s%d, s%d, %d" % (sT2, sT0, 28 * 896))
    e("s_add_u32 s%d, s%d, s%d" % (sSbase, sT1, sT2))
    e("s_lshl_b32 s%d, s%d, 1" % (sT1, sTB))
    e("s_add_u32 s%d, s%d, s%d" % (sT0, sT0, sT1))
    e("s_mul_i32 s%d, s%d, %d" % (sActBase, sT0, TG_STRIDE))

def srd(d, p, n):
    e("s_mov_b32 s%d, s%d" % (d, p)); e("s_mov_b32 s%d, s%d" % (d + 1, p + 1))
    e("s_mov_b32 s%d, %d" % (d + 2, n)); e("s_mov_b32 s%d, 0x20000" % (d + 3))

def tables(us, wstep):
    for u in us:
        e("s_cmp_ge_u32 s%d, %d" % (sRot, 7 - u))
        e("s_cselect_b32 s%d, s%d, s%d" % (sXc + u, sT1, sT0))
        e("s_cselect_b32 s%d, s%d, s%d" % (sWc + u, sT3, sT2))
        if u:
            e("s_add_u32 s%d, s%d, %d" % (sXc + u, sXc + u, 128 * u))
            e("s_add_u32 s%d, s%d, %d" % (sWc + u, sWc + u, wstep * u))

def x_dma(u, base):
    def f0(): dma(SRD_X, vXd0, sXc + u, (sLdsX, base), "c%d" % u)
    def f1(): dma(SRD_X, vXd1, sXc + u, (sLdsX, base), "c%d" % u, imm=1024)
    return [f0, f1]

def tr_addr(d, mulhalf_sreg, rowreg, T):
    e("v_add_u32 v%d, s%d, v%d" % (T + 14, mulhalf_sreg, T + 12))
    e("v_lshrrev_b32 v%d, 1, v%d" % (T + 1, T + 14))
    e("v_and_b32 v%d, 2, v%d" % (T + 2, T + 9))
    e("v_lshlrev_b32 v%d, 1, v%d" % (T + 2, T + 2))
    e("v_xor_b32 v%d, v%d, v%d" % (T + 1, T + 1, T + 2))
    e("v_and_b32 v%d, 1, v%d" % (T + 14, T + 14))
    e("v_lshlrev_b32 v%d, 3, v%d" % (T + 14, T + 14))
    e("v_lshl_add_u32 v%d, v%d, 4, v%d" % (T + 14, T + 1, T + 14))
    e("v_lshl_add_u32 v%d, v%d, 7, v%d" % (d, rowreg, T + 14))

def setup_min(att):
    T = TMP
    e("s_and_b32 s%d, s%d, 3" % (sTG, sWave))
    e("s_lshr_b32 s%d, s%d, 2" % (sHalf, sWave))
    e("v_and_b32 v%d, 31, v%d" % (T + 6, vLane))
    e("v_lshrrev_b32 v%d, 5, v%d" % (T + 7, vLane))
    e("v_bfe_u32 v%d, v%d, 1, 3" % (T + 8, vLane))
    e("v_xor_b32 v%d, v%d, v%d" % (T + 8, T + 8, T + 7))
    e("v_lshlrev_b32 v%d, 4, v%d" % (T + 8, T + 8))
    e("v_lshl_add_u32 v%d, v%d, 7, v%d" % (T + 8, T + 6, T + 8))
    e("s_lshl_b32 s%d, s%d, 12" % (sT4, sTG))
    e("s_add_u32 s%d, s%d, %d" % (sT4, sT4, AS[0]))
    e("s_mul_i32 s%d, s%d, %d" % (sT0, sHalf, 7 if att else 8))
    for s in range(4):
        e("v_xor_b32 v%d, %d, v%d" % (vXr + s, s << 5, T + 8))
        e("v_add_u32 v%d, s%d, v%d" % (vXr + s, sT4, vXr + s))
    e("v_bfe_u32 v%d, v%d, 2, 2" % (T + 9, vLane))
    e("v_and_b32 v%d, 3, v%d" % (T + 10, vLane))
    e("v_bfe_u32 v%d, v%d, 4, 1" % (T + 11, vLane))
    e("v_lshl_add_u32 v%d, v%d, 2, v%d" % (T + 12, T + 11, T + 10))
    e("v_lshl_add_u32 v%d, v%d, 3, v%d" % (T + 13, T + 7, T + 9))
    tr_addr(vTr2, sT0, T + 13, T)
    if att:
        e("v_add_u32 v%d, %d, v%d" % (vTr, AS[0] + 16384, vTr2))
    else:
        e("s_lshl_b32 s%d, s%d, 6" % (sT0, sHalf))
        e("s_lshl_b32 s%d, s%d, 13" % (sT1, sHalf))
        e("s_add_u32 s%d, s%d, %d" % (sT1, sT1, AS[0] + 16384))
        e("v_xor_b32 v%d, s%d, v%d" % (vTr, sT0, vTr2))
        e("v_add_u32 v%d, s%d, v%d" % (vTr, sT1, vTr))
        e("v_xor_b32 v%d, 64, v%d" % (vTrX, vTr))
    e("v_lshlrev_b32 v%d, 2, v%d" % (T + 14, vLane))
    e("ds_write_b32 v%d, v%d offset:%d" % (T + 14, vZero, MISC))

def setup_pieces():
    T = TMP
    def p0():
        srd(SRD_WS, sWS, WS_BYTES)
        e("v_lshlrev_b32 v%d, 4, v%d" % (vL16, vLane))
        e("s_lshl_b32 s%d, s%d, 2" % (sT4, sRB))
        e("s_add_u32 s%d, s%d, s%d" % (sT4, sT4, sTG))
        e("s_mul_i32 s%d, s%d, %d" % (sActBase, sT4, TG_STRIDE))
    def p1():
        e("s_lshr_b32 s%d, s2, 3" % sT3)
        e("s_mul_i32 s%d, s%d, 37" % (sT4, sT3))
        e("s_lshr_b32 s%d, s%d, 8" % (sT4, sT4))
        e("s_mul_i32 s%d, s%d, 7" % (sT5, sT4))
        e("s_sub_u32 s%d, s%d, s%d" % (sCB, sT3, sT5))
        e("s_and_b32 s%d, s2, 7" % sT0)
        e("s_lshl_b32 s%d, s%d, 2" % (sTB, sT0))
        e("s_add_u32 s%d, s%d, s%d" % (sTB, sTB, sT4))
        e("s_add_u32 s%d, s%d, s%d" % (sRot2, sCB, sT4))
        e("s_lshl_b32 s%d, s%d, 1" % (sRot2, sRot2))
        if cfg.rot2 == 0: e("s_mov_b32 s%d, 0" % sRot2)
        if cfg.rot2 == 3:
            e("s_and_b32 s%d, s2, 7" % sRot2)
            e("s_lshl_b32 s%d, s%d, 1" % (sRot2, sRot2))
        if cfg.rot2 == 4:
            e("s_and_b32 s%d, s2, 1" % sT5)
            e("s_lshl_b32 s%d, s%d, 1" % (sT5, sT5))
            e("s_add_u32 s%d, s%d, s%d" % (sRot2, sRot2, sT5))
        if cfg.rot2 == 2: e("s_and_b32 s%d, s%d, 2" % (sRot2, sRot2))
    def p2():
        e("s_lshr_b32 s%d, s%d, 1" % (sT1, sTB))
        e("s_mul_i32 s%d, s%d, %d" % (sPark, sWave, 8 * 896))
        e("s_lshl_b32 s%d, s%d, 7" % (sT0, sCB))
        e("s_add_u32 s%d, s%d, s%d" % (sPark, sPark, sT0))
        e("s_lshl_b32 s%d, s%d, 9" % (sSlot, sT1))
        e("s_add_u32 s%d, s%d, %d" % (sSlot, sSlot, WS_FR))
        e("s_lshl_b32 s%d, s%d, 8" % (sSlotH, sJ))
        e("s_add_u32 s%d, s%d, %d" % (sSlotH, sSlotH, WS_FH))
    def p3():
        srd(SRD_W2, sW2, 1792 * 896); srd(SRD_WO, sWO, 448 * 896)
    def p4():
        e("s_mov_b32 s%d, 0x3fb8aa3b" % sL2); e("s_mov_b32 s%d, 0x3fb8aa3b" % (sL2 + 1))
        e("s_mov_b32 s%d, 0x358637bd" % sEp); e("s_mov_b32 s%d, 0x358637bd" % (sEp + 1))
        e("v_and_b32 v%d, 15, v%d" % (vFl, vLane))
        e("v_lshlrev_b32 v%d, 3, v%d" % (vFl, vFl))
        e("v_lshlrev_b32 v%d, 6, v%d" % (vTrS, T + 13))
        e("v_lshl_add_u32 v%d, v%d, 3, v%d" % (vTrS, T + 12, vTrS))
        e("v_add_u32 v%d, %d, v%d" % (vTrS, SR, vTrS))
    def p5():
        e("v_lshl_add_u32 v%d, v%d, 2, v%d" % (T + 4, T + 7, T + 9))
        e("s_and_b32 s%d, s%d, 1" % (sT0, sWave))
        e("s_lshl_b32 s%d, s%d, 3" % (sT1, sT0))
        tr_addr(vWlo, sT1, T + 4, T)
        e("v_add_u32 v%d, %d, v%d" % (vWhi, 7 * 16384, vWlo))
        e("v_add_u32 v%d, %d, v%d" % (vWlo, 4 * 16384, vWlo))
    def p6():
        e("s_and_b32 s%d, s%d, 1" % (sT0, sWave))
        e("s_bfe_u32 s%d, s%d, 0x10001" % (sT1, sWave))
        e("s_lshl_b32 s%d, s%d, 12" % (sT2, sT1))
        e("v_add_u32 v%d, s%d, v%d" % (vAr, sT2, vL16))
        e("s_lshl_b32 s%d, s%d, 1" % (sT2, sTB))
        e("s_add_u32 s%d, s%d, s%d" % (sT2, sT2, sT1))
        e("s_mul_i32 s%d, s%d, %d" % (sOutB, sT2, 32 * 896))
        e("s_lshl_b32 s%d, s%d, 7" % (sT3, sCB))
        e("s_add_u32 s%d, s%d, s%d" % (sOutB, sOutB, sT3))
        e("s_lshl_b32 s%d, s%d, 6" % (sT0, sT0))
        e("s_add_u32 s%d, s%d, s%d" % (sOutB, sOutB, sT0))
        e("s_lshl_b32 s%d, s%d, 7" % (sT2, sT2))
        e("s_add_u32 s%d, s%d, %d" % (sT2, sT2, WS_G))
        e("v_lshl_add_u32 v%d, v%d, 2, s%d" % (vG, T + 6, sT2))
    def p7():
        e("v_mul_u32_u24 v%d, 896, v%d" % (vOut, T + 6))
        e("v_lshl_add_u32 v%d, v%d, 4, v%d" % (vOut, T + 7, vOut))
        e("v_mul_u32_u24 v%d, 896, v%d" % (T + 3, T))
        e("v_lshl_add_u32 v%d, v%d, 4, v%d" % (vW2d, T + 5, T + 3))
        for i in range(1, 4):
            e("v_add_u32 v%d, %d, v%d" % (vW2d + i, i * (8 * 896 - 1024), vW2d))
    return [p0, p1, p2, p3, p4, p5, p6, p7]

def first_part(att):
    T = TMP
    stride = 2688 if att else 3584
    e("s_mul_i32 s%d, s%d, %d" % (sT0, sRB, 128 * 896))
    e("s_lshl_b32 s%d, s%d, 7" % (sT1, sRot))
    e("s_add_u32 s%d, s%d, s%d" % (sT0, sT0, sT1))
    e("s_sub_u32 s%d, s%d, 896" % (sT1, sT0))
    e("s_mul_i32 s%d, s%d, %d" % (sT2, sRot, 64 * stride))
    e("s_mul_i32 s%d, s%d, %d" % (sT3, sJ, 112 if att else 448))
    e("s_add_u32 s%d, s%d, s%d" % (sT2, sT2, sT3))
    e("s_sub_u32 s%d, s%d, %d" % (sT3, sT2, 7 * 64 * stride))
    tables(range(7), 64 * stride)
    e("v_lshl_add_u32 v%d, s%d, 3, v%d" % (T + 3, sWave, T))
    e("v_mul_u32_u24 v%d, %d, v%d" % (T + 3, stride, T + 3))
    if att:
        e("v_min_u32 v%d, 6, v%d" % (T + 4, T + 5))
        e("v_lshl_add_u32 v%d, v%d, 4, v%d" % (vWd, T + 4, T + 3))
    else:
        e("s_and_b32 s%d, s%d, 1" % (sT5, sJ))
        e("s_lshl_b32 s%d, s%d, 6" % (sT4, sT5))
        e("v_lshl_add_u32 v%d, v%d, 4, v%d" % (vWd, T + 5, T + 3))
        e("v_add_u32 v%d, s%d, v%d" % (vWd, sT4, vWd))
        e("s_cmp_eq_u32 s%d, 0" % sT5)
        e("s_cselect_b32 s%d, 384, 0" % sT5)
        e("s_and_b32 s%d, s%d, 3" % (sT4, sWave))
        e("s_mul_i32 s%d, s%d, %d" % (sT4, sT4, 16 * 3584))
        e("s_add_u32 s%d, s%d, s%d" % (sT4, sT4, sT5))
        e("v_lshrrev_b32 v%d, 2, v%d" % (T + 3, vLane))
        e("v_mul_u32_u24 v%d, 3584, v%d" % (T + 3, T + 3))
        e("v_and_b32 v%d, 3, v%d" % (T + 4, vLane))
        e("v_lshl_add_u32 v%d, v%d, 4, v%d" % (vSd, T + 4, T + 3))
        e("v_add_u32 v%d, s%d, v%d" % (vSd, sT4, vSd))
    e("s_waitcnt lgkmcnt(0)")
    if cfg.ksplit:
        e("s_load_dwordx4 s[20:23], s[0:1], 64")
        e("s_load_dwordx2 s[24:25], s[0:1], 80")
    e("s_lshl_b32 s%d, s%d, 10" % (sLdsW, sWave))
    e("s_lshl_b32 s%d, s%d, 11" % (sLdsX, sWave))
    srd(SRD_X, sX, 2048 * 896)
    if att: srd(SRD_W, sWQKV, 448 * 2688)
    else: srd(SRD_W, sW1, 448 * 3584)

def publish_nonce():
    e("s_or_b32 s%d, s2, s%d" % (sT4, sWave))
    def f():
        e("s_lshl_b64 s[%d:%d], s[%d:%d], 2" % (sNonce, sNonce + 1, sNonce, sNonce + 1))
        e("s_or_b32 s%d, s%d, 0x40000000" % (sNonce + 1, sNonce + 1))
        e("v_mov_b32 v%d, s%d" % (PK, sNonce))
        e("v_mov_b32 v%d, s%d" % (PK + 1, sNonce + 1))
        e("s_mov_b64 exec, 1")
        e("global_store_dwordx2 v%d, %s, s[%d:%d] sc0 sc1" % (vZero, R(PK, 2), sDBG, sDBG + 1))
        e("s_mov_b64 exec, -1")
    cond("s_cmp_lg_u32 s%d, 0" % sT4, f)

def addr_step(regs, delta):
    for r in regs:
        e("v_add_u32 v%d, 0x%x, v%d" % (r, delta & 0xffffffff, r))

def chunk_dmas(u, att):
    b = AS[u % 3]
    c0, c1 = (896, 1792) if att else (0, 128)
    L = x_dma(u, b)
    L.append(lambda: dma(SRD_W, vWd, sWc + u, (sLdsW, b + 16384 - c0), "c%d" % u, imm=c0))
    L.append(lambda: dma(SRD_W, vWd, sWc + u, (sLdsW, b + 24576 - c1), "c%d" % u, imm=c1))
    return L

def bias_frag(breg):
    e("v_mov_b32 v%d, v%d" % (TMP + 20, breg))
    e("s_nop 1")

def stream(att, extra):
    items = []; bnd = {}; fill = {}
    for u in range(7):
        def boundary(u=u):
            g.wait("c%d" % u, lgkm0=True)
            barrier()
            if u: addr_step([vXr, vXr + 1, vXr + 2, vXr + 3, vTr] + ([] if att else [vTrX]), AS[u % 3] - AS[(u - 1) % 3])
            for s in range(4):
                g.ds("ds_read_b128 %s, v%d" % (R(16 * u + 4 * s, 4, "a"), vXr + s), "x")
            g.lazy(1 if u == 0 else 57 + u)
        bnd[len(items)] = boundary
        lo = len(items)
        for t in range(2):
            for s in range(4):
                k = len(items); w = 64 + 4 * (k % 8)
                def rd(k=k, w=w, t=t, s=s):
                    o = (t * 8192 if att else 0) + s * 2048
                    ar = vTrX if (t and not att) else vTr
                    g.ds("ds_read_b64_tr_b16 %s, v%d offset:%d" % (R(w, 2), ar, o), k)
                    g.ds("ds_read_b64_tr_b16 %s, v%d offset:%d" % (R(w + 2, 2), ar, o + 512), k)
                def mf(k=k, w=w, t=t, s=s, u=u):
                    if not att and u == 2 and s == 0:
                        bias_frag(vFlag + t)
                        mfma(R(ACC[t], 16), R(TMP + 20), R(TMP + 16), R(ACC[t], 16))
                    g.lwait(k)
                    X = R(16 * u + 4 * s, 4, "a"); C = "0" if (u == 0 and s == 0) else R(ACC[t], 16)
                    if att: mfma(R(ACC[t], 16), X, R(w), C)
                    else: mfma(R(ACC[t], 16), R(w), X, C)
                items.append((rd, mf))
        hi = len(items)
        fl = chunk_dmas(u + 2, att) if u <= 4 else []
        ex = extra.get(u, [])
        mix = []
        for i in range(max(len(fl), len(ex))):
            if i < len(fl): mix.append(fl[i])
            if i < len(ex): mix.append(ex[i])
        spread(fill, mix, max(lo - 4 + cfg.bd1, 0), (hi - 4 + cfg.bd1) if u < 6 else hi)
    pipe(items, 4, bnd, fill, cfg.bd1)

def tile_items(acc, areg, rowbytes, base, bias):
    items = []
    for k in range(28):
        w = 64 + 4 * (k % 8)
        def rd(k=k, w=w):
            g.ds("ds_read_b64_tr_b16 %s, v%d offset:%d" % (R(w, 2), areg, base + k * 16 * rowbytes), k)
            g.ds("ds_read_b64_tr_b16 %s, v%d offset:%d" % (R(w + 2, 2), areg, base + (k * 16 + 4) * rowbytes), k)
        def mf(k=k, w=w):
            if k == 0 and bias is not None:
                bias_frag(bias)
                mfma(R(acc, 16), R(TMP + 20), R(TMP + 16), "0")
            g.lwait(k)
            mfma(R(acc, 16), R(w), R(4 * k, 4, "a"), "0" if (k == 0 and bias is None) else R(acc, 16))
        items.append((rd, mf))
    return items

def tile(acc, areg, rowbytes, base, bias=None, bnd=None, fill=None, pre=False):
    items = tile_items(acc, areg, rowbytes, base, bias)
    if pre: items = [((lambda: None) if k < cfg.td else rd, mf) for k, (rd, mf) in enumerate(items)]
    pipe(items, cfg.td, bnd or {}, fill or {}, 0)

def tile_pre(areg, rowbytes, base):
    for rd, mf in tile_items(0, areg, rowbytes, base, None)[:cfg.td]: rd()

def parks(ns): return [lambda n=n, h=h: park(n, h) for n in ns for h in (0, 1)]

def setprio(p):
    if cfg.prio == 2: e("s_setprio %d" % p)

def nop(): pass

def ffn_path():
    T = TMP
    for f in chunk_dmas(0, False): f()
    if cfg.c0bar: barrier()
    setup_min(False)
    for f in chunk_dmas(1, False): f()
    P = setup_pieces()
    def b0():
        e("s_mul_i32 s%d, s%d, 7" % (sT4, sJ))
        e("s_and_b32 s%d, s%d, 1" % (sT5, sJ))
        e("s_add_u32 s%d, s%d, s%d" % (sTile0, sT4, sT5))
        e("s_add_u32 s%d, s%d, s%d" % (sTile0, sTile0, sHalf))
        e("s_add_u32 s%d, s%d, 4" % (sTileP, sTile0))
        e("s_add_u32 s%d, s%d, s%d" % (sTile0, sTile0, sHalf))
        e("s_cmp_eq_u32 s%d, 0" % sT5)
        e("s_cselect_b32 s%d, 6, 0" % sT5)
        e("s_add_u32 s%d, s%d, s%d" % (sTileS, sT4, sT5))
        srd(SRD_OUT, sB1, 3584)
    def b1():
        e("v_lshlrev_b32 v%d, 1, v%d" % (T + 15, T + 6))
        e("v_lshl_add_u32 v%d, v%d, 12, v%d" % (T + 15, T + 7, T + 15))
        e("s_lshl_b32 s%d, s%d, 6" % (sT0, sTile0))
        e("s_lshl_b32 s%d, s%d, 6" % (sT1, sTileS))
        e("s_lshl_b32 s%d, s%d, 6" % (sT2, sTileP))
        for r, so, o in ((vFlag, sT0, 0), (vFlag + 1, sT0, 64), (vGate, sT2, 0), (vGate + 1, sT1, 0)):
            g.vm("buffer_load_ushort v%d, v%d, s[%d:%d], s%d offen offset:%d" % (r, T + 15, SRD_OUT, SRD_OUT + 3, so, o), "bias")
    def b2():
        for i in range(16, 24): e("v_mov_b32 v%d, %s" % (T + i, "0x3f80" if i == 16 else "0"))
    def b3():
        for r in (sTile0, sTileS, sTileP):
            e("s_lshl_b32 s%d, s%d, 11" % (r, r))
            e("s_add_u32 s%d, s%d, s%d" % (r, r, sActBase))
    def spf():
        e("s_and_b32 s%d, s%d, 7" % (sT0, sRB))
        e("s_lshl_b32 s%d, s%d, 1" % (sT0, sT0))
        e("s_and_b32 s%d, s%d, 1" % (sT1, sJ))
        e("s_add_u32 s%d, s%d, s%d" % (sT0, sT0, sT1))
        e("s_lshl_b32 s%d, s%d, 3" % (sT0, sT0))
        e("s_add_u32 s%d, s%d, s%d" % (sT0, sT0, sWave))
        e("s_mul_i32 s%d, s%d, %d" % (sT0, sT0, 4 * 3584))
        e("s_lshr_b32 s%d, s%d, 1" % (sT1, sJ))
        e("s_mul_i32 s%d, s%d, 896" % (sT1, sT1))
        e("s_add_u32 s%d, s%d, s%d" % (sT0, sT0, sT1))
        e("v_mul_u32_u24 v%d, 3584, v%d" % (T + 15, vLane))
        e("s_mov_b64 exec, 15")
        g.vm("buffer_load_dword v%d, v%d, s[%d:%d], s%d offen offset:384" % (vPoll, T + 15, SRD_W, SRD_W + 3, sT0), "spf")
        e("s_mov_b64 exec, -1")
    b0(); b1()
    def p2page(u):
        e("s_add_u32 s%d, s%d, 256" % (sT0, sWc + u))
        dma(SRD_W, vWd, sT0, (sLdsW, QR + u * 8192), "p2")
    pp = lambda u: (lambda: p2page(u))
    extra = {0: ([publish_nonce] if cfg.ksplit else []) + [b2, P[0], b3] + ([spf] if cfg.spf else []), 1: [P[1], P[2]], 2: [nonce_issue, P[3], P[4]],
             3: [P[5], P[6], lambda: srd(SRD_OUT, sOUT, 2048 * 896)],
             4: [P[7]], 5: [pp(0), pp(1), nonce_get, pp(2), pp(3)], 6: [pp(4), pp(5), pp(6)]}
    if cfg.prio == 1: cond("s_cmp_lt_u32 s%d, 4" % sWave, lambda: e("s_setprio 1"))
    stream(False, extra)
    g.stamp(2)
    O = 32 * 1024
    q0 = list(g.q)
    e("s_cmp_lg_u32 s%d, 0" % sHalf)
    e("s_cbranch_scc1 L_ffnB")
    e("s_nop 3")
    epi_mish(ACC[0], sTile0, O, "st0", pk=cfg.pk0)
    g.stamp(34)
    g.wait("p2"); barrier(); g.stamp(3)
    epi_mish(ACC[1], sTile0, O + 2048, "st0", pk=cfg.pk1, fills=[nop, nop, nop, lambda: tile_pre(vTr2, 128, QR)])
    g.lazy(35)
    def f1a():
        g.wait("st0"); signal1(0)
    fill = {cfg.f1pos: [f1a], cfg.f1pos + 3: [lambda: signal2(4, "FR", 1)]}
    tile(ACC[0], vTr2, 128, QR, bias=vGate, fill=fill, pre=True)
    g.stamp(36)
    barrier(); g.lazy(5)
    tile(ACC[1], vTrS, 64, 0, bias=vGate + 1)
    g.stamp(37)
    barrier(); g.lazy(6)
    e("s_nop 3")
    epi_mish(ACC[0], sTileP, O, "st2", pk=True)
    epi_mish(ACC[1], sTileS, O, "st3", pk=True)
    g.stamp(38)
    e("s_branch L_cons")
    g.lab("L_ffnB"); g.q = q0
    sD = sPark
    producer_setup()
    g.stamp(34)
    g.wait("p2"); barrier(); g.lazy(3)
    if cfg.prio == 3: e("s_setprio 1")
    fill = {}
    spread(fill, [lambda u=u: dma(SRD_W, vSd, sWc + u, (sLdsW, SR + u * 4096 - 4096), "S") for u in range(7)], 0, cfg.sspan)
    tile(ACC2, vTr2, 128, QR, bias=vGate, fill=fill)
    if cfg.prio == 3: e("s_setprio 0")
    g.stamp(35)
    epi_mish(ACC[0], sTile0, O, "st1", pk=cfg.pk1, fills=W_dmas(0, sD) + W_dmas(1, sD))
    g.stamp(36)
    g.wait("S"); barrier(); g.lazy(5)
    w23 = W_dmas(2, sD) + W_dmas(3, sD)
    w23.insert(cfg.ppos, lambda: g.vm(poll_instr(sSlot, 1), "poll"))
    epi_mish(ACC[1], sTile0, O + 2048, "st1", pk=cfg.pk1, fills=w23)
    g.stamp(37)
    barrier()
    g.wait("poll")
    poll_test(0xff00)
    la = g.newlab("L_late"); lb = g.newlab("L_j")
    e("s_cbranch_scc0 %s" % la)
    q1 = list(g.q)
    def s2a():
        g.wait("st1"); signal1(1)
    sig = [nop, nop, nop, s2a, lambda: signal2(4, "FR", 2)]
    g.stamp(7)
    for n in range(3): p2_issue_A(n)
    epi_mish(ACC2, sTileP, O, "st2", pk=True, fills=sig)
    g.stamp(38)
    g.wait("A0")
    qe = list(g.q)
    e("s_branch %s" % lb)
    g.lab(la); g.q = q1
    g.vm(poll_instr(sSlot, 1), "poll")
    epi_mish(ACC2, sTileP, O, "st2", pk=True, fills=sig)
    g.stamp(38)
    g.wait("poll")
    poll_check(sSlot, 1, 0xff00)
    g.stamp(7)
    for n in range(3): p2_issue_A(n)
    e("s_waitcnt vmcnt(8)")
    g.lab(lb)
    g.q = qe
    producers(False, both=True, late={0: [(0, f) for f in W_dmas(4, sT0) + W_dmas(5, sT0)]})

def pq_pads():
    e("s_mov_b32 exec_lo, 0")
    e("v_mov_b32 v%d, 0" % (PK + 6)); e("v_mov_b32 v%d, 0" % (PK + 7))
    e("s_mov_b64 exec, -1")

def o_compute():
    T = TMP; PV = TMP + 16
    e("s_lshl_b32 s%d, s%d, 12" % (sT0, sHalf))
    e("s_add_u32 s%d, s%d, %d" % (sT0, sT0, MISC))
    e("v_lshl_add_u32 v%d, v%d, 2, s%d" % (PV, vLane, sT0))
    for i in range(8):
        e("ds_read2st64_b32 %s, v%d offset0:%d offset1:%d" % (R(T + 2 * i, 2), PV, 2 * i, 2 * i + 1))
        if i == 2: e("s_waitcnt lgkmcnt(3)")
    e("s_waitcnt lgkmcnt(0)")
    for i in range(8):
        e("v_cvt_pk_bf16_f32 v%d, v%d, v%d" % (PV + i, T + 2 * i, T + 2 * i + 1))
    e("s_nop 1")
    mfma(R(T, 16), R(PV), R(PK), "0")
    mfma(R(T, 16), R(PV + 4), R(PK + 4), R(T, 16))
    e("s_lshl_b32 s%d, s%d, 2" % (sT1, sRB))
    e("s_add_u32 s%d, s%d, s%d" % (sT1, sT1, sTG))
    e("s_mul_i32 s%d, s%d, %d" % (sT1, sT1, TG_STRIDE))
    e("s_lshl_b32 s%d, s%d, 1" % (sT0, sJ))
    e("s_add_u32 s%d, s%d, s%d" % (sT0, sT0, sHalf))
    e("s_lshl_b32 s%d, s%d, 11" % (sT0, sT0))
    e("s_add_u32 s%d, s%d, s%d" % (sT0, sT0, sT1))
    e("s_nop 5")
    e("v_mov_b32 v%d, v%d" % (PV, T + 12))
    e("v_mov_b32 v%d, v%d" % (PV + 1, T + 12))
    e("s_nop 1")
    e("v_permlane32_swap_b32 v%d, v%d" % (PV, PV + 1))
    e("s_nop 1")
    e("v_add_f32 v%d, s%d, v%d" % (PV + 1, sEps, PV + 1))
    e("v_rcp_f32 v%d, v%d" % (PV + 1, PV + 1))
    e("s_nop 0")
    for i in range(16):
        e("v_mul_f32 v%d, v%d, v%d" % (T + i, T + i, PV + 1))
    for i in range(8):
        e("v_cvt_pk_bf16_f32 v%d, v%d, v%d" % (PK + i, T + 2 * i, T + 2 * i + 1))
    pq_pads()
    e("buffer_store_dwordx4 %s, v%d, s[%d:%d], s%d offen sc0 sc1" % (R(PK), vL16, SRD_WS, SRD_WS + 3, sT0))
    e("buffer_store_dwordx4 %s, v%d, s[%d:%d], s%d offen offset:1024 sc0 sc1" % (R(PK + 4), vL16, SRD_WS, SRD_WS + 3, sT0))

def kv_load():
    e("s_lshl_b32 s%d, s%d, 13" % (sT0, sJ))
    e("s_lshl_b32 s%d, s%d, 11" % (sT1, sTG))
    e("s_add_u32 s%d, s%d, s%d" % (sT0, sT0, sT1))
    e("s_add_u32 s%d, s%d, %d" % (sT0, sT0, WS_KV))
    dma(SRD_WS, vL16, sT0, (sT1, MISC), "kvl", sc="sc1")
    dma(SRD_WS, vL16, sT0, None, "kvl", imm=1024, sc="sc1")

def q_dma(u):
    e("s_add_u32 m0, s%d, %d" % (sLdsW, QR + u * 8192))
    e("s_mov_b32 exec_lo, 0xf7f77f7f"); e("s_mov_b32 exec_hi, 0xf7f77f7f")
    g.vm("buffer_load_dwordx4 v%d, s[%d:%d], s%d offen lds" % (vWd, SRD_W, SRD_W + 3, sWc + u), "Q%d" % u)
    e("s_mov_b64 exec, -1")

def att_path():
    T = TMP
    for f in chunk_dmas(0, True): f()
    if cfg.c0bar: barrier()
    setup_min(True)
    for f in chunk_dmas(1, True): f()
    P = setup_pieces()
    e("s_add_u32 s%d, s%d, s%d" % (sT0, sWave, sRot))
    e("s_cmp_ge_u32 s%d, 7" % sT0)
    e("s_cselect_b32 s%d, 7, 0" % sT1)
    e("s_sub_u32 s%d, s%d, s%d" % (sT0, sT0, sT1))
    e("s_lshl_b32 s%d, s%d, 7" % (sT0, sT0))
    e("v_lshl_add_u32 v%d, v%d, 1, s%d" % (T + 15, vLane, sT0))
    g.vm("global_load_ushort v%d, v%d, s[%d:%d]" % (vGate, T + 15, sGATE, sGATE + 1), "gate")
    def zero_kv():
        for i in range(4): e("v_mov_b32 v%d, 0" % (T + 16 + i))
        e("s_lshl_b32 s%d, s%d, 13" % (sT0, sJ))
        e("s_lshl_b32 s%d, s%d, 9" % (sT1, sRB))
        e("s_add_u32 s%d, s%d, s%d" % (sT0, sT0, sT1))
        e("s_add_u32 s%d, s%d, %d" % (sT0, sT0, WS_KV))
        e("s_mov_b32 exec_hi, 0")
        e("buffer_store_dwordx4 %s, v%d, s[%d:%d], s%d offen sc0 sc1" % (R(T + 16), vL16, SRD_WS, SRD_WS + 3, sT0))
        e("s_mov_b64 exec, -1")
    def a0():
        e("v_cmp_eq_u32 vcc, 28, v%d" % (T + 6))
        e("v_mov_b32 v%d, 0x3f803f80" % (T + 20))
        e("v_mov_b32 v%d, 0" % (vGate + 1))
        e("v_cndmask_b32 v%d, 0, v%d, vcc" % (vVpad, T + 20))
        e("v_bfe_u32 v%d, v%d, 1, 1" % (T + 21, vLane))
        e("v_lshlrev_b32 v%d, 6, v%d" % (T + 21, T + 21))
        e("v_xor_b32 v%d, 0x70, v%d" % (T + 21, T + 21))
        e("v_lshl_add_u32 v%d, v%d, 7, v%d" % (T + 21, vLane, T + 21))
        e("s_lshl_b32 s%d, s%d, 13" % (sT0, sWave))
        e("v_add_u32 v%d, s%d, v%d" % (T + 21, sT0, T + 21))
    def gate_write():
        cond("s_cmp_eq_u32 s%d, 7" % sWave, lambda: e("ds_write_b64 v%d, %s offset:%d" % (T + 21, R(vGate, 2), QR)))
    def zflag():
        nonce_get()
        only_wave(1, lambda: write_flag("FH", 1))
    qq = lambda p: (lambda: q_dma(p))
    if cfg.qearly:
        extra = {0: [P[0], lambda: only_wave(1, zero_kv), a0], 1: [qq(0), P[1], qq(1), P[2]], 2: [qq(2), nonce_issue, gate_write, P[3], qq(3), P[4]],
             3: [qq(4), P[5], P[6], qq(5), lambda: srd(SRD_OUT, sOUT, 2048 * 896)], 4: [qq(6), P[7]],
             5: parks((0,)) + [zflag] + parks((1,)),
             6: [nop, nop, lambda: g.vm(poll_instr(sSlotH, 1), "poll")]}
    else:
        extra = {0: [P[0], lambda: only_wave(1, zero_kv), a0], 1: [nonce_issue, P[1], P[2]], 2: [gate_write, P[3], P[4]],
             3: [P[5], P[6], lambda: srd(SRD_OUT, sOUT, 2048 * 896)], 4: [P[7], zflag],
             5: [qq(p) for p in range(4)],
             6: [lambda: g.vm(poll_instr(sSlotH, 1), "poll")] + [qq(p) for p in range(4, 7)]}
    if cfg.prio == 1: cond("s_cmp_lt_u32 s%d, 4" % sWave, lambda: e("s_setprio 1"))
    stream(True, extra)
    g.stamp(2)
    PV = 64
    e("s_nop 7")
    epi_phi(ACC[0], PK)
    for i in range(8):
        e("v_cvt_pk_bf16_f32 v%d, v%d, v%d" % (PV + i, ACC[1] + 2 * i, ACC[1] + 2 * i + 1))
    e("s_mov_b32 exec_lo, 0xf0000000"); e("s_mov_b32 exec_hi, 0xf0000000")
    for i in range(8):
        e("v_mov_b32 v%d, 0" % (PK + i)); e("v_mov_b32 v%d, v%d" % (PV + i, vVpad))
    e("s_mov_b64 exec, -1")
    e("s_nop 1")
    mfma(R(ACC[0], 16), R(PK), R(PV), "0")
    mfma(R(ACC[0], 16), R(PK + 4), R(PV + 4), R(ACC[0], 16))
    e("s_lshl_b32 s%d, s%d, 12" % (sT0, sWave))
    e("s_add_u32 s%d, s%d, %d" % (sT0, sT0, KVSCR))
    e("v_add_u32 v%d, s%d, v%d" % (T, sT0, vL16))
    e("s_nop 7"); e("s_nop 1")
    for qd in range(4):
        e("ds_write_b128 v%d, %s offset:%d" % (T, R(ACC[0] + 4 * qd), qd * 1024))
    g.wait("Q2", lgkm0=True, must=False)
    barrier(); g.stamp(3)
    e("s_lshl_b32 s%d, s%d, 14" % (sT0, sHalf))
    e("s_lshl_b32 s%d, s%d, 10" % (sT1, sTG))
    e("s_add_u32 s%d, s%d, s%d" % (sT0, sT0, sT1))
    e("s_add_u32 s%d, s%d, %d" % (sT0, sT0, KVSCR))
    e("v_add_u32 v%d, s%d, v%d" % (T + 16, sT0, vL16))
    for p in range(4):
        e("ds_read_b128 %s, v%d offset:%d" % (R(T + 4 * p), T + 16, p * 4096))
    g.wait("poll")
    poll_check(sSlotH, 1, 0xffff)
    e("s_waitcnt lgkmcnt(0)")
    for i in range(4):
        e("v_add_f32 v%d, v%d, v%d" % (T + i, T + i, T + 4 + i))
        e("v_add_f32 v%d, v%d, v%d" % (T + 8 + i, T + 8 + i, T + 12 + i))
    for i in range(4):
        e("v_add_f32 v%d, v%d, v%d" % (T + i, T + i, T + 8 + i))
    e("s_lshl_b32 s%d, s%d, 13" % (sT0, sJ))
    e("s_add_u32 s%d, s%d, s%d" % (sT0, sT0, sLdsW))
    e("s_add_u32 s%d, s%d, %d" % (sT0, sT0, WS_KV))
    e("v_lshlrev_b32 v%d, 2, v%d" % (T + 17, vLane))
    for i in range(4):
        g.vm("buffer_atomic_add_f32 v%d, v%d, s[%d:%d], s%d offen offset:%d" % (T + i, T + 17, SRD_WS, SRD_WS + 3, sT0, i * 256), "atom")
    def k2():
        g.wait("Q6", must=False); barrier(); g.lazy(4)
    fill = {}
    if cfg.apk == 0:
        spread(fill, parks((2, 3) if cfg.qearly else (0, 1, 2, 3)), 0, 8)
        spread(fill, parks((4, 5)), 9, 20)
    else:
        spread(fill, parks((2, 3, 4, 5) if cfg.qearly else (0, 1, 2, 3, 4, 5)), 0, 28)
    fill.setdefault(22, []).insert(0, lambda: g.vm(poll_instr(sSlot, 1), "poll"))
    tile(ACC[1], vTr2, 128, QR, bnd={12: k2}, fill=fill)
    g.stamp(34)
    g.wait("atom")
    signal1(0)
    q1 = list(g.q); lq1 = list(g.lq)
    e("s_cmp_lg_u32 s%d, 0" % sHalf)
    e("s_cbranch_scc1 L_attB")
    signal2(8, "FH", 2)
    e("s_nop 3")
    epi_phi(ACC[1], PK)
    pq_pads()
    barrier(); g.stamp(5)
    e("s_cmp_ge_u32 s2, 224"); e("s_cbranch_scc1 L_idleA")
    g.wait_all()
    e("s_branch L_cons")
    g.lab("L_attB"); g.q = q1; g.lq = lq1
    signal2(8, "FH", 2)
    producer_setup()
    barrier(); g.stamp(5)
    def a_first():
        e("s_waitcnt vmcnt(0)")
        poll_check(sSlot, 1, 0xff00)
        g.stamp(6)
        for n in range(3): p2_issue_A(n)
    cond("s_cmp_ge_u32 s2, 224", a_first)
    def gout():
        e("v_mul_f32 v%d, s%d, v%d" % (T, sLog2e, ACC[1] + 12))
        e("v_exp_f32_e64 v%d, -v%d" % (T, T))
        e("s_nop 0")
        e("v_add_f32 v%d, 1.0, v%d" % (T, T))
        e("v_rcp_f32 v%d, v%d" % (T, T))
        e("v_lshlrev_b32 v%d, 2, v%d" % (T + 1, vLane))
        e("s_lshl_b32 s%d, s%d, 2" % (sT0, sRB))
        e("s_add_u32 s%d, s%d, s%d" % (sT0, sT0, sTG))
        e("s_lshl_b32 s%d, s%d, 7" % (sT0, sT0))
        e("s_add_u32 s%d, s%d, %d" % (sT0, sT0, WS_G - 128))
        e("s_mov_b32 exec_lo, 0")
        e("buffer_store_dword v%d, v%d, s[%d:%d], s%d offen sc0 sc1" % (T, T + 1, SRD_WS, SRD_WS + 3, sT0))
        e("s_mov_b64 exec, -1")
        e("s_nop 0")
    cond("s_cmp_lg_u32 s%d, 0" % sJ, gout)
    epi_phi(ACC[1], PK)
    pq_pads()
    e("s_cmp_ge_u32 s2, 224"); e("s_cbranch_scc1 L_idleB")
    e("s_waitcnt vmcnt(8)")
    g.q = ["A1"] * 4 + ["A2"] * 4
    producers(True)
    g.lab("L_idleB")
    e(poll_instr(sSlotH, 2))
    e("s_waitcnt vmcnt(0)")
    poll_check(sSlotH, 2, 0xffff)
    kv_load()
    g.lab("L_idleA")
    e("s_waitcnt vmcnt(0)")
    barrier()
    o_compute()
    e("s_waitcnt vmcnt(0)")
    barrier()
    only_wave(0, lambda: write_flag("FR", 3))
    e("s_branch L_fin")

def producers(att, both=False, late={}):
    g.lq = []
    barrier(); g.stamp(8)
    q2 = ["A1"] * 4 + ["A2"] * 4
    n0 = len(g.q)
    for c, f in late.get(0, []): f()
    q2 = q2 + g.q[n0:]
    for n in range(1, 18):
        tags = ["A%d" % n, "W%d" % n] + (["st2"] if n == cfg.f3 else [])
        if both and n <= 5:
            c1 = g.vcount(tags)
            qa = g.q; g.q = q2; c2 = g.vcount(tags); q2 = g.q; g.q = qa
            cs = [c for c in (c1, c2) if c is not None]
            if cs: e("s_waitcnt vmcnt(%d)" % min(cs))
            n0 = len(g.q)
        else: g.wait(tags, must=False)
        g.stamp(16 + n)
        barrier()
        if att and n == 3: kv_load()
        if att and n == 5:
            o_compute()
            g.q += ["so", "so"]
        if n + 2 <= 17: p2_issue_A(n + 2)
        if n + 5 <= 17: p2_issue_W(n + 5)
        for c, f in late.get(n, []): f()
        if both and n <= 5: q2 = q2 + g.q[n0:]
        g.stamp(40 + n)
    g.stamp(9)
    e("s_branch L_fin")

def phase2():
    g.lab("L_cons"); g.q = []; g.lq = []
    accA, accB = ACC[0], ACC[1]
    items = []; bnd = {}; fill = {}
    gates = {2: (2, 0xff00), 6: (3, 0xff00), 12: (3, 0xff)}
    samp = {2 - cfg.gs2: 2, 6 - cfg.gs6: 3, 12 - cfg.gs12: 3}
    for n in range(18):
        def boundary(n=n):
            if n in gates:
                def chk():
                    e("s_waitcnt vmcnt(0)")
                    poll_check(sSlot, gates[n][0], gates[n][1])
                only_wave(0, chk)
            if n == 3:
                def chk():
                    e("s_waitcnt vmcnt(0)")
                    poll_check(sSlotH, 2, 0xffff)
                only_att(lambda: only_wave(1, chk))
            if n == 7: e("s_waitcnt vmcnt(0)")
            if n == cfg.f3:
                assert n in gates or n - 1 not in samp
                only_ffn(lambda: e("s_waitcnt vmcnt(0)"))
            if n: g.lwait0()
            barrier()
            g.lazy(16 + n if n else 8)
            if n == cfg.f3: only_ffn(lambda: only_wave(0, lambda: write_flag("FR", 3)))
            if n == 7: only_att(lambda: only_wave(0, lambda: write_flag("FR", 3)))
            if n in samp: only_wave(0, lambda: e(poll_instr(sSlot, samp[n])))
            if n == 1: only_att(lambda: only_wave(1, lambda: e(poll_instr(sSlotH, 2))))
        bnd[len(items)] = boundary
        for s in range(8):
            k = len(items); w = 8 * (k % 8)
            def rd(k=k, w=w, n=n, s=s):
                wt = WT(n)
                a, o = (vWlo, wt - 4 * 16384) if wt < 7 * 16384 else (vWhi, wt - 7 * 16384)
                o += (s // 4) * 8192 + (s % 4) * 2048
                g.ds("ds_read_b64_tr_b16 %s, v%d offset:%d" % (R(w, 2, "a"), a, o), k)
                g.ds("ds_read_b64_tr_b16 %s, v%d offset:%d" % (R(w + 2, 2, "a"), a, o + 1024), k)
                g.ds("ds_read_b128 %s, v%d offset:%d" % (R(w + 4, 4, "a"), vAr, AT(n) + (s // 4) * 8192 + (s % 4) * 1024), k)
            def mf(k=k, w=w, n=n, s=s):
                g.lwait(k)
                acc = accB if n < 14 else accA
                mfma(R(acc, 16), R(w, 4, "a"), R(w + 4, 4, "a"), "0" if (n in (0, 14) and s == 0) else R(acc, 16))
            items.append((rd, mf))
    fill[5 * 8] = [lambda: only_att(o_compute)]
    fill[13 * 8] = [lambda: e("buffer_load_dword v%d, v%d, s[%d:%d], 0 offen sc1" % (vG, vG, SRD_WS, SRD_WS + 3))]
    pipe(items, 4, bnd, fill, cfg.bd2)
    g.stamp(9)
    e("s_waitcnt vmcnt(0)")
    mfma_fence()
    WF = TMP
    for i in range(16):
        e("v_sub_f32 v%d, v%d, v%d" % (accA + i, accA + i, accB + i))
    for i in range(16):
        e("v_fma_f32 v%d, v%d, v%d, v%d" % (accA + i, accA + i, vG, accB + i))
    for i in range(8):
        e("v_cvt_pk_bf16_f32 v%d, v%d, v%d" % (WF + i, accA + 2 * i, accA + 2 * i + 1))
    e("s_nop 1")
    for qq in range(2):
        e("v_permlane32_swap_b32 v%d, v%d" % (WF + 4 * qq, WF + 4 * qq + 2))
        e("v_permlane32_swap_b32 v%d, v%d" % (WF + 4 * qq + 1, WF + 4 * qq + 3))
    e("s_nop 1")
    for qq in range(2):
        e("buffer_store_dwordx4 %s, v%d, s[%d:%d], s%d offen offset:%d" % (R(WF + 4 * qq), vOut, SRD_OUT, SRD_OUT + 3, sOutB, qq * 32))

def build():
    T = TMP
    e("s_cmp_ge_u32 s2, 256")
    e("s_cbranch_scc1 L_end")
    e("s_load_dwordx16 s[4:19], s[0:1], 0")
    if not cfg.ksplit:
        e("s_load_dwordx4 s[20:23], s[0:1], 64")
        e("s_load_dwordx2 s[24:25], s[0:1], 80")
    e("s_memrealtime s[%d:%d]" % (sNonce, sNonce + 1))
    if cfg.stamps:
        e("s_memrealtime s[98:99]")
        e("s_memtime s[%d:%d]" % (sMask, sMask + 1))
    e("v_lshrrev_b32 v%d, 6, v0" % T)
    e("v_and_b32 v%d, 63, v0" % vLane)
    e("v_readfirstlane_b32 s%d, v%d" % (sWave, T))
    e("v_mov_b32 v%d, 0" % vZero)
    e("s_lshr_b32 s%d, s2, 3" % sT0)
    e("s_and_b32 s%d, s2, 1" % sT1)
    e("s_lshl_b32 s%d, s%d, 3" % (sT1, sT1))
    e("s_and_b32 s%d, s%d, 7" % (sT2, sT0))
    e("s_add_u32 s%d, s%d, s%d" % (sRB, sT1, sT2))
    e("s_lshr_b32 s%d, s%d, 3" % (sT3, sT0))
    e("s_and_b32 s%d, s2, 6" % sT1)
    e("s_and_b32 s%d, s%d, 1" % (sT4, sT3))
    e("s_lshl_b32 s%d, s%d, 1" % (sT5, sT3))
    e("s_add_u32 s%d, s%d, s%d" % (sRot, sT2, sT5))
    e("s_cmp_ge_u32 s%d, 7" % sRot)
    e("s_cselect_b32 s%d, 7, 0" % sT5)
    e("s_sub_u32 s%d, s%d, s%d" % (sRot, sRot, sT5))
    if cfg.rot1 == 0: e("s_mov_b32 s%d, 0" % sRot)
    if cfg.rot1 == 2: e("s_and_b32 s%d, s%d, 1" % (sRot, sT2))
    if cfg.rot1 == 7:
        e("s_and_b32 s%d, s2, 7" % sRot)
        e("s_cmp_eq_u32 s%d, 7" % sRot)
        e("s_cselect_b32 s%d, 3, s%d" % (sRot, sRot))
    if cfg.rot1 == 8:
        e("s_xor_b32 s%d, s%d, s%d" % (sRot, sT2, sT3))
        e("s_and_b32 s%d, s%d, 1" % (sRot, sRot))
        e("s_mul_i32 s%d, s%d, 3" % (sRot, sRot))
        e("s_and_b32 s%d, s2, 7" % sT5)
        e("s_add_u32 s%d, s%d, s%d" % (sRot, sRot, sT5))
        e("s_cmp_ge_u32 s%d, 7" % sRot)
        e("s_cselect_b32 s%d, 7, 0" % sT5)
        e("s_sub_u32 s%d, s%d, s%d" % (sRot, sRot, sT5))
    if cfg.rot1 == 3: e("s_mov_b32 s%d, s%d" % (sRot, sT3))
    if cfg.rot1 == 4:
        e("s_xor_b32 s%d, s%d, s%d" % (sRot, sT2, sT3))
        e("s_and_b32 s%d, s%d, 1" % (sRot, sRot))
        e("s_mul_i32 s%d, s%d, 3" % (sRot, sRot))
    if cfg.rot1 == 5:
        e("s_add_u32 s%d, s%d, s%d" % (sRot, sT2, sT3))
        e("s_mul_i32 s%d, s%d, 43" % (sT5, sRot))
        e("s_lshr_b32 s%d, s%d, 7" % (sT5, sT5))
        e("s_mul_i32 s%d, s%d, 3" % (sT5, sT5))
        e("s_sub_u32 s%d, s%d, s%d" % (sRot, sRot, sT5))
        e("s_lshl_b32 s%d, s%d, 1" % (sRot, sRot))
    if cfg.rot1 == 6:
        e("s_add_u32 s%d, s%d, s%d" % (sRot, sT2, sT3))
        e("s_and_b32 s%d, s%d, 3" % (sRot, sRot))
        e("s_lshl_b32 s%d, s%d, 1" % (sRot, sRot))
    e("v_lshrrev_b32 v%d, 3, v%d" % (T, vLane))
    e("v_and_b32 v%d, 7, v%d" % (T + 1, vLane))
    e("v_lshrrev_b32 v%d, 4, v%d" % (T + 2, vLane))
    e("v_lshl_add_u32 v%d, s%d, 4, v%d" % (T + 3, sWave, T))
    e("v_mul_u32_u24 v%d, 896, v%d" % (T + 3, T + 3))
    e("v_xor_b32 v%d, v%d, v%d" % (T + 4, T + 1, T + 2))
    e("v_lshl_add_u32 v%d, v%d, 4, v%d" % (vXd0, T + 4, T + 3))
    e("v_xor_b32 v%d, 4, v%d" % (T + 4, T + 4))
    e("v_lshl_add_u32 v%d, v%d, 4, v%d" % (vXd1, T + 4, T + 3))
    e("v_add_u32 v%d, %d, v%d" % (vXd1, 8 * 896 - 1024, vXd1))
    e("v_and_b32 v%d, 1, v%d" % (T + 5, T + 2))
    e("v_lshlrev_b32 v%d, 2, v%d" % (T + 5, T + 5))
    e("v_xor_b32 v%d, v%d, v%d" % (T + 5, T + 5, T + 1))
    e("s_cmp_ge_u32 s%d, 2" % sT3)
    e("s_cbranch_scc1 L_att")
    e("s_add_u32 s%d, s%d, s%d" % (sJ, sT1, sT4))
    e("s_add_u32 s%d, s%d, 8" % (sRole, sJ))
    first_part(False)
    if cfg.stamps: e("v_writelane_b32 v%d, s%d, 0" % (vSt, sMask))
    if not cfg.ksplit:
        g.stamp(15)
        publish_nonce()
    g.q = []; g.lq = []
    ffn_path()
    g.lab("L_att"); g.q = []; g.lq = []
    e("s_cmp_eq_u32 s%d, 6" % sT1)
    e("s_cselect_b32 s%d, 1, 0" % sT5)
    e("s_xor_b32 s%d, s%d, s%d" % (sT4, sT4, sT5))
    e("s_add_u32 s%d, s%d, s%d" % (sJ, sT1, sT4))
    e("s_mov_b32 s%d, s%d" % (sRole, sJ))
    first_part(True)
    if cfg.stamps: e("v_writelane_b32 v%d, s%d, 0" % (vSt, sMask))
    att_path()
    phase2()
    g.lab("L_fin")
    if cfg.stamps:
        e("s_waitcnt vmcnt(0)")
        g.stamp(10)
        e("s_lshl_b32 s%d, s2, 3" % sT0)
        e("s_add_u32 s%d, s%d, s%d" % (sT0, sT0, sWave))
        e("s_lshl_b32 s%d, s%d, 8" % (sT0, sT0))
        e("s_add_u32 s%d, s%d, %d" % (sMask, sWS, WS_STAMP))
        e("s_addc_u32 s%d, s%d, 0" % (sMask + 1, sWS + 1))
        e("v_lshl_add_u32 v%d, v%d, 2, s%d" % (TMP, vLane, sT0))
        e("v_writelane_b32 v%d, s98, 12" % vSt)
        e("s_getreg_b32 s%d, hwreg(HW_REG_HW_ID)" % sT3)
        e("v_writelane_b32 v%d, s%d, 14" % (vSt, sT3))
        e("s_getreg_b32 s%d, hwreg(HW_REG_XCC_ID)" % sT3)
        e("v_writelane_b32 v%d, s%d, 13" % (vSt, sT3))
        e("s_memrealtime s[%d:%d]" % (sStamp, sStamp + 1))
        e("s_waitcnt lgkmcnt(0)")
        e("v_writelane_b32 v%d, s%d, 11" % (vSt, sStamp))
        e("global_store_dword v%d, v%d, s[%d:%d]" % (TMP, vSt, sMask, sMask + 1))
        if cfg.dbgwg >= 0:
            e("s_cmp_lg_u32 s2, %d" % cfg.dbgwg); e("s_cbranch_scc1 L_end")
            e("s_cmp_lg_u32 s%d, 0" % sWave); e("s_cbranch_scc1 L_end")
            e("v_lshlrev_b32 v%d, 2, v%d" % (TMP, vLane))
            e("s_mov_b64 exec, 0x1fff")
            e("global_store_dword v%d, v%d, s[%d:%d] offset:8" % (TMP, vSt, sDBG, sDBG + 1))
    g.lab("L_end")
    e("s_endpgm")

def main():
    out = sys.argv[1]
    for a in sys.argv[2:]:
        k, v = a.split("=")
        assert hasattr(cfg, k), k
        setattr(cfg, k, int(v))
    build()
    K = NAME + "_kernel"
    hdr = "; gated mix: linear attention block + mish FFN, single persistent launch (written with my own generator script)\n"
    hdr += "; @launch grid=(256,1,1) block=(512,1,1) lds=%d\n" % LDS_BYTES
    hdr += '.amdgcn_target "amdgcn-amd-amdhsa--gfx950"\n.text\n.globl %s\n.p2align 8\n.type %s,@function\n%s:\n' % (K, K, K)
    ftr = '''.section .rodata,"a"
.p2align 6
.amdhsa_kernel %s
  .amdhsa_next_free_vgpr %d
  .amdhsa_next_free_sgpr 102
  .amdhsa_accum_offset %d
  .amdhsa_group_segment_fixed_size 0
  .amdhsa_kernarg_size 88
  .amdhsa_user_sgpr_count 2
  .amdhsa_user_sgpr_kernarg_segment_ptr 1
  .amdhsa_system_sgpr_workgroup_id_x 1
.end_amdhsa_kernel
''' % (K, NVG + NAG, NVG)
    open(out, "w").write(hdr + "\n".join(g.L) + "\n" + ftr)
main()
```

```python
import sys
NAME = "gated_mix__linear_attn_block__dense_activation_mish__prompt"

class Cfg:
    stamps = 0
    spin_limit = 1 << 20
    dbgwg = -1
    bd1 = 0
    bd2 = 1
    prio = 0
    pk1 = 0
    f1pos = 24
    pollpos = 18
    rot1 = 1
    rot2 = 1
    c0bar = 0
    spf = 1
    ksplit = 0
    gs2 = 1
    gs6 = 2
    gs12 = 2
    qearly = 0
    f3 = 2
    xnost = 0
    xnos = 0
    xnow = 0
    td = 4
    pk0 = 1
    sspan = 28
    ppos = 5
    apk = 0
    m2 = 0
    f1a = 24
    f1b = 14
    f2a = 3
    f2b = 2
    sp1 = 22
    cp1 = 10
    f4 = 3
    defer = 1
    kvl = 2
    oc = 4
    of = 6
    apos = 16
    asp = 4
    acp = 20
    npos = 1
    wspan = 16
    outsc = 0
    peek = 1
    bsn = 3
    bcn = 4
    wpf = 0
    map = 0
    slp = 1
    d2 = 0
    gord = 1
    e2lo = 0
    e2hi = 14
    eslo = 16
    eshi = 40
    olen = 10
    oc2 = 6
    bs1 = 20
    bcp = 8
    as1 = 2
    dphi = 1
    wa = 0
    xl = 0
    xg = 0
    wp = 3399
    w2lo = 8
    spre = 0
    na = 2
    cp2 = 99
    cp3 = 99
    acp2 = 99
    aw45 = 1
    awlo = 9
    apark = 8
    asc = 1
    w01 = 3
    w23 = 4
    bo = 1
    glds = 1
    wlo = 0
    whi = 28
    w4lo = 12
cfg = Cfg()

TG_STRIDE = 144 * 1024
WS_KV = 0x1000000
WS_G = WS_KV + 0x10000
WS_FH = WS_G + 0x2000
WS_FR = WS_FH + 0x800
WS_BYTES = 0x1100000
WS_STAMP = 0x8000000

AS = [65536, 131072, 98304]
QR = 0
MISC = 57344
PQX = 49152
KVSCR = 98304
SR = 98304
def WT(n): return [5, 4, 9, 8, 7, 6][n % 6] * 16384
def QP(u): return (131072 if u < 4 else 0) + u * 8192
def AT(n): return (n % 3) * 16384
LDS_BYTES = 163840

sX, sWQKV, sWO, sW1, sB1, sW2, sGATE, sOUT, sDBG, sWS = 4, 6, 8, 12, 14, 16, 18, 20, 22, 24
sLdsW, sLdsX = 10, 11
sL2 = 26
sLog2e = 26
sEp = 86
sEps = 86
SRD_X, SRD_W, SRD_W2, SRD_WO, SRD_WS, SRD_OUT = 28, 32, 36, 40, 44, 48
sWave, sRB, sJ, sRot, sTB, sCB, sRole, sTG = 52, 53, 54, 55, 56, 57, 58, 59
sNonce = 60
sT0, sT1, sT2, sT3, sT4, sT5 = 62, 63, 64, 65, 66, 67
sXc = 68
sWc = 75
sActBase, sSlot, sCnt, sRot2 = 82, 83, 84, 85
sMask = 86
sPark, sSlotH, sDone, sP2, sHalf = 88, 89, 91, 92, 93
sOutB = 90
sStamp = 94
sW8, sTileP = 96, 97
sTile0, sTileS = 100, 101
sGW = 100
sWbase, sSbase = sXc, sXc + 1
vLane, vXd0, vXd1, vWd, vSd = 1, 2, 3, 4, 5
vVpad = 5
vXr = 6
vTr, vTr2, vL16, vFl = 10, 11, 12, 13
vGate = 14
vPoll = 16
vW2d = 18
vZero = 22
vSt = 23
vFlag = 24
vAr, vWlo, vWhi, vOut, vG, vTrS = 26, 27, 28, 29, 30, 31
ACC = [32, 48, 64, 80]
TMP = 96
PK = 120
vPoll2 = 128
ACCX = 128
NVG = 144
NAG = 112

class Gen:
    def __init__(self):
        self.L = []; self.H = [[]]; self.keepH = True; self.lq = []; self.nlab = 0; self.pend = None
    def e(self, s): self.L.append("  " + s)
    def lab(self, s): self.L.append(s + ":")
    def newlab(self, p="L"):
        self.nlab += 1
        return "%s_%d" % (p, self.nlab)
    def vm(self, s, tag):
        self.e(s)
        for q in self.H: q.append(tag)
    def save(self): return [list(q) for q in self.H]
    def load(self, H): self.H = [list(q) for q in H]
    def vcount(self, tags):
        if isinstance(tags, str): tags = [tags]
        best = None
        for k, q in enumerate(self.H):
            last = -1
            for i, t in enumerate(q):
                if t in tags: last = i
            if last < 0: continue
            n = len(q) - 1 - last
            best = n if best is None else min(best, n)
        if best is None: return None
        assert best <= 63
        self.H = [q[max(len(q) - best, 0):] if best else [] for q in self.H]
        if not self.keepH:
            U = []
            for q in self.H:
                if q not in U: U.append(q)
            self.H = U
        return best
    def wait(self, tags, lgkm0=False, must=True):
        n = self.vcount(tags)
        assert n is not None or not must, ("tag not in queue", tags, self.H)
        s = []
        if n is not None: s.append("vmcnt(%d)" % n)
        if lgkm0: s.append("lgkmcnt(0)"); self.lq = []
        if s: self.e("s_waitcnt " + " ".join(s))
        if lgkm0: self.flush()
    def wait_all(self, lgkm0=False):
        self.e("s_waitcnt vmcnt(0)" + (" lgkmcnt(0)" if lgkm0 else "")); self.H = [[] for q in self.H]
        if lgkm0: self.lq = []
    def ds(self, s, tag):
        if len(self.lq) == 15:
            self.e("s_waitcnt lgkmcnt(11)"); self.lq = self.lq[4:]
        self.e(s); self.lq.append(tag)
        assert len(self.lq) <= 15, self.lq
    def lwait(self, tag):
        last = -1
        for i, t in enumerate(self.lq):
            if t == tag: last = i
        if last < 0: return
        self.e("s_waitcnt lgkmcnt(%d)" % (len(self.lq) - 1 - last))
        self.lq = self.lq[last + 1:]
    def lwait0(self):
        self.e("s_waitcnt lgkmcnt(0)"); self.lq = []
        self.flush()
    def lazy(self, idx):
        if cfg.stamps != 1: return
        assert self.pend is None
        self.e("s_memtime s[0:1]")
        self.pend = idx
    def flush(self):
        if self.pend is not None:
            self.e("v_writelane_b32 v%d, s0, %d" % (vSt, self.pend)); self.pend = None
    def stamp(self, idx):
        if cfg.stamps != 1: return
        self.e("s_memtime s[%d:%d]" % (sStamp, sStamp + 1))
        self.e("s_waitcnt lgkmcnt(0)")
        self.e("v_writelane_b32 v%d, s%d, %d" % (vSt, sStamp, idx))
        self.flush()

g = Gen()
e = g.e

def R(b, n=4, p="v"): return "%s[%d:%d]" % (p, b, b + n - 1)

def dma(srd, voff, soff, m0, tag, imm=0, sc=""):
    if m0 is not None:
        e("s_add_u32 m0, s%d, %d" % m0)
        e("s_nop 0")
    g.vm("buffer_load_dwordx4 v%d, s[%d:%d], s%d offen%s%s lds" % (voff, srd, srd + 3, soff, (" offset:%d" % imm) if imm else "", (" " + sc) if sc else ""), tag)

def mfma(d, a, b, c):
    e("v_mfma_f32_32x32x16_bf16 %s, %s, %s, %s" % (d, a, b, c))

def mfma_fence():
    e("s_nop 7"); e("s_nop 4")

def barrier(): e("s_barrier")

def pipe(items, D, bnd, fill, bd):
    N = len(items); nr = 0
    def reads(upto, i):
        nonlocal nr
        while nr <= upto and nr < N:
            if nr in bnd:
                if i is not None and i < nr - D + bd: break
                bnd[nr]()
            items[nr][0](); nr += 1
    reads(D - 1, None)
    for i in range(N):
        assert nr > i
        items[i][1]()
        reads(i + D, i)
        for f in fill.get(i, []): f()

def spread(fill, fns, lo, hi):
    n = len(fns)
    for k, f in enumerate(fns):
        pos = lo + (k * (hi - lo)) // n
        fill.setdefault(pos, []).append(f)

def run_ops(ops, fills):
    tot = sum(c for c, _ in ops); n = len(fills); k = 0; acc = 0
    for c, f in ops:
        f(); acc += c
        while k < n and acc >= (k + 0.5) * tot / n:
            fills[k](); k += 1
    while k < n: fills[k](); k += 1

def mish_ops(acc, sbase, off, tag, pk):
    T = TMP
    P = lambda r: "v[%d:%d]" % (r, r + 1)
    L = []
    def op(c, t): L.append((c, lambda: e(t)))
    for b in range(0, 16, 8):
        r = range(b, b + 8); r2 = range(b, b + 8, 2)
        src = T
        if pk:
            for i in r2: op(4, "v_pk_mul_f32 %s, s[%d:%d], %s" % (P(T + i - b), sL2, sL2 + 1, P(acc + i)))
        else:
            for i in r: op(4, "v_mul_f32 v%d, s%d, v%d" % (T + i - b, sL2, acc + i))
        for i in r: op(8, "v_exp_f32 v%d, v%d" % (T + i - b, T + i - b))
        if pk:
            for i in r2: op(4, "v_pk_fma_f32 %s, %s, 0.5, 1.0 op_sel_hi:[1,0,0]" % (P(T + 8 + i - b), P(T + i - b)))
            for i in r2: op(4, "v_pk_fma_f32 %s, %s, %s, 1.0 op_sel_hi:[1,1,0]" % (P(T + i - b), P(T + i - b), P(T + 8 + i - b)))
        elif cfg.m2:
            for i in r: op(4, "v_add_f32 v%d, 1.0, v%d" % (T + i - b, T + i - b))
            for i in r: op(4, "v_fmaak_f32 v%d, v%d, v%d, 0x3f800000" % (T + i - b, T + i - b, T + i - b))
        else:
            for i in r: op(4, "v_fma_f32 v%d, v%d, 0.5, 1.0" % (T + 8 + i - b, T + i - b))
            for i in r: op(4, "v_fma_f32 v%d, v%d, v%d, 1.0" % (T + i - b, T + i - b, T + 8 + i - b))
        if cfg.m2 and not pk:
            for i in r: op(8, "v_rcp_f32_e64 v%d, -v%d mul:2" % (T + i - b, T + i - b))
        else:
            for i in r: op(8, "v_rcp_f32 v%d, v%d" % (T + i - b, T + i - b))
        if pk:
            for i in r2: op(4, "v_pk_fma_f32 %s, %s, %s, %s neg_lo:[1,0,0] neg_hi:[1,0,0]" % (P(T + i - b), P(acc + i), P(T + i - b), P(acc + i)))
        elif cfg.m2:
            for i in r: op(4, "v_fmac_f32 v%d, v%d, v%d" % (acc + i, T + i - b, acc + i))
            src = acc + b
        else:
            for i in r: op(4, "v_fma_f32 v%d, -v%d, v%d, v%d" % (T + i - b, acc + i, T + i - b, acc + i))
        for i in range(0, 8, 2):
            op(4, "v_cvt_pk_bf16_f32 v%d, v%d, v%d" % (PK + (b + i) // 2, src + i, src + i + 1))
        def st(b=b):
            e("s_add_u32 s%d, s%d, %d" % (sT5, sbase, off + (b // 8) * 1024))
            g.vm("buffer_store_dwordx4 %s, v%d, s[%d:%d], s%d offen sc0 sc1" % (R(PK + b // 2), vL16, SRD_WS, SRD_WS + 3, sT5), tag)
        L.append((5, st))
    return L

def epi_mish(acc, sbase, off, tag, fills=(), pk=False):
    run_ops(mish_ops(acc, sbase, off, tag, pk), list(fills))

def phi_ops(acc, dst, pk=True):
    T = TMP
    L = []
    def op(c, t): L.append((c, lambda: e(t)))
    P = lambda r: "v[%d:%d]" % (r, r + 1)
    for b in range(0, 16, 8):
        r = range(b, b + 8); r2 = range(b, b + 8, 2)
        if pk:
            for i in r2: op(4, "v_pk_mul_f32 %s, s[%d:%d], %s" % (P(T + i - b), sL2, sL2 + 1, P(acc + i)))
        else:
            for i in r: op(4, "v_mul_f32 v%d, s%d, v%d" % (T + i - b, sL2, acc + i))
        for i in r: op(8, "v_exp_f32_e64 v%d, v%d clamp" % (T + i - b, T + i - b))
        for i in r: op(4, "v_max_f32 v%d, 0, v%d" % (T + 8 + i - b, acc + i))
        if pk:
            for i in r2: op(4, "v_pk_add_f32 %s, %s, %s" % (P(T + i - b), P(T + i - b), P(T + 8 + i - b)))
            for i in r2: op(4, "v_pk_add_f32 %s, s[%d:%d], %s" % (P(T + i - b), sEp, sEp + 1, P(T + i - b)))
        else:
            for i in r: op(4, "v_add_f32 v%d, v%d, v%d" % (T + i - b, T + i - b, T + 8 + i - b))
            for i in r: op(4, "v_add_f32 v%d, s%d, v%d" % (T + i - b, sEp, T + i - b))
        for i in range(0, 8, 2):
            op(4, "v_cvt_pk_bf16_f32 v%d, v%d, v%d" % (dst + (b + i) // 2, T + i, T + i + 1))
    return L

def epi_phi(acc, dst, fills=(), pk=True):
    run_ops(phi_ops(acc, dst, pk), list(fills))

def write_flag(kind, stage):
    if kind == "FR": base, hi, sh, lo = WS_FR, sRB, 9, sRole
    else: base, hi, sh, lo = WS_FH, sJ, 8, sRB
    e("s_lshl_b32 s%d, s%d, %d" % (sT0, hi, sh))
    e("s_lshl_b32 s%d, s%d, 3" % (sT1, lo))
    e("s_add_u32 s%d, s%d, s%d" % (sT0, sT0, sT1))
    e("s_add_u32 s%d, s%d, %d" % (sT0, sT0, base + (stage - 1) * 128))
    e("v_mov_b32 v%d, s%d" % (vFlag, sNonce))
    e("v_mov_b32 v%d, s%d" % (vFlag + 1, sNonce + 1))
    e("s_mov_b64 exec, 1")
    e("buffer_store_dwordx2 %s, v%d, s[%d:%d], s%d offen sc0 sc1" % (R(vFlag, 2), vZero, SRD_WS, SRD_WS + 3, sT0))
    e("s_mov_b64 exec, -1")

def signal1(c):
    e("v_mov_b32 v%d, 1" % vFlag)
    e("s_mov_b64 exec, 1")
    g.ds("ds_add_rtn_u32 v%d, v%d, v%d offset:%d" % (vFlag + 1, vZero, vFlag, MISC + 4 * c), "cnt")
    e("s_mov_b64 exec, -1")
def signal2(count, kind, stage):
    g.lwait("cnt")
    e("v_readfirstlane_b32 s%d, v%d" % (sT0, vFlag + 1))
    e("s_nop 3")
    cond("s_cmp_lg_u32 s%d, %d" % (sT0, count - 1), lambda: write_flag(kind, stage))

def poll_instr(soff, stage, reg=None):
    return "buffer_load_dwordx2 %s, v%d, s[%d:%d], s%d offen offset:%d sc1" % (R(reg or vPoll, 2), vFl, SRD_WS, SRD_WS + 3, soff, (stage - 1) * 128)

def poll_test(mask, reg=None):
    if (cfg.xg & 1 and mask != 0xffff) or (cfg.xg & 4): mask = 0
    e("v_cmp_eq_u64 vcc, s[%d:%d], %s" % (sNonce, sNonce + 1, R(reg or vPoll, 2)))
    e("s_and_b32 s%d, vcc_lo, %d" % (sT2, mask))
    e("s_cmp_eq_u32 s%d, %d" % (sT2, mask))

def poll_check(soff, stage, mask, reg=None):
    again = g.newlab("L_poll"); ok = g.newlab("L_pok"); chk = g.newlab("L_pchk")
    e("s_mov_b32 s%d, %d" % (sCnt, cfg.spin_limit))
    e("s_branch %s" % chk)
    g.lab(again)
    e("s_sleep %d" % cfg.slp)
    e(poll_instr(soff, stage, reg))
    e("s_waitcnt vmcnt(0)")
    g.lab(chk)
    poll_test(mask, reg)
    e("s_cbranch_scc1 %s" % ok)
    e("s_sub_u32 s%d, s%d, 1" % (sCnt, sCnt))
    e("s_cmp_lg_u32 s%d, 0" % sCnt)
    e("s_cbranch_scc1 %s" % again)
    g.lab(ok)

def sample(soff=None, stage=1, reg=None, tag="poll"):
    g.vm(poll_instr(sSlot if soff is None else soff, stage, reg), tag)

def poll_clear():
    e("v_mov_b32 v%d, 0" % vPoll); e("v_mov_b32 v%d, 0" % (vPoll + 1))

def try_issue(fn, last, resample=True, stampi=None, peek=False):
    skip = g.newlab("L_try"); done = g.newlab("L_trd")
    e("s_cmp_lg_u32 s%d, 0" % sDone)
    e("s_cbranch_scc1 %s" % done)
    H = g.save(); lq = list(g.lq)
    g.H = [list(H[-1])]
    if not peek: g.wait("poll", must=False)
    pend = list(g.H[0])
    if last: poll_check(sSlot, 1, 0xff00)
    else:
        poll_test(0xff00)
        e("s_cbranch_scc0 %s" % skip)
    if stampi is not None: g.stamp(stampi)
    fn()
    e("s_mov_b32 s%d, 1" % sDone)
    new = g.H[0]
    if not last:
        e("s_branch %s" % done)
        g.lab(skip)
        e(poll_instr(sSlot, 1)); pend.append("poll")
    g.H = H[:-1] + [new] + ([] if last else [pend])
    g.lq = lq
    g.lab(done)

def nonce_issue():
    g.vm("global_load_dwordx2 %s, v%d, s[%d:%d] sc1" % (R(vPoll, 2), vZero, sDBG, sDBG + 1), "nonce")

def nonce_get():
    again = g.newlab("L_non"); ok = g.newlab("L_nok"); chk = g.newlab("L_nchk")
    e("s_mov_b32 s%d, %d" % (sCnt, cfg.spin_limit))
    e("s_branch %s" % chk)
    g.lab(again)
    e("s_sleep 1")
    e("global_load_dwordx2 %s, v%d, s[%d:%d] sc1" % (R(vPoll, 2), vZero, sDBG, sDBG + 1))
    e("s_waitcnt vmcnt(0)")
    g.lab(chk)
    e("v_readfirstlane_b32 s%d, v%d" % (sNonce, vPoll))
    e("v_readfirstlane_b32 s%d, v%d" % (sNonce + 1, vPoll + 1))
    e("s_nop 3")
    e("s_cmp_lg_u32 s%d, 0" % (sNonce + 1))
    e("s_cbranch_scc1 %s" % ok)
    e("s_sub_u32 s%d, s%d, 1" % (sCnt, sCnt))
    e("s_cmp_lg_u32 s%d, 0" % sCnt)
    e("s_cbranch_scc1 %s" % again)
    g.lab(ok)

def cond(cmp, fn):
    skip = g.newlab("L_skip")
    e(cmp)
    e("s_cbranch_scc1 %s" % skip)
    H, lq = g.save(), list(g.lq)
    fn()
    g.load(H); g.lq = lq
    g.lab(skip)
def only_wave(w, fn): cond("s_cmp_lg_u32 s%d, %d" % (sWave, w), fn)
def only_att(fn): cond("s_cmp_ge_u32 s%d, 8" % sRole, fn)
def only_ffn(fn): cond("s_cmp_lt_u32 s%d, 8" % sRole, fn)

def chunk_id(n, sreg, add):
    base = n - n % 4
    e("s_add_u32 s%d, s%d, %d" % (sT2, sreg, add + 2 * (n - base)))
    if n < 12:
        e("s_bfe_u32 s%d, s%d, 0x20001" % (sT3, sT2))
        e("s_and_b32 s%d, s%d, 1" % (sT2, sT2))
        e("s_lshl_b32 s%d, s%d, 2" % (sT2, sT2))
        e("s_mul_i32 s%d, s%d, 7" % (sT3, sT3))
        e("s_add_u32 s%d, s%d, s%d" % (sT2, sT2, sT3))
        if n >= 4: e("s_add_u32 s%d, s%d, %d" % (sT2, sT2, n // 4))
    else:
        e("s_and_b32 s%d, s%d, 3" % (sT2, sT2))
        e("s_mul_i32 s%d, s%d, 7" % (sT2, sT2))
        e("s_add_u32 s%d, s%d, 3" % (sT2, sT2))

def park(n, h):
    chunk_id(n, sRot2, h)
    e("s_mul_i32 s%d, s%d, %d" % (sT0, sT2, 64 * 896))
    e("s_add_u32 s%d, s%d, s%d" % (sT0, sT0, sPark))
    dma(SRD_W2, vW2d, sT0, (sLdsW, WT(n) + h * 8192), "W%d" % n)

def A_dmas(n, sD):
    def first():
        if n < 14:
            chunk_id(n, sP2, 0)
            e("s_lshl_b32 s%d, s%d, 12" % (sD, sT2))
            e("s_add_u32 s%d, s%d, %d" % (sD, sD, 32 * 1024))
        else:
            e("s_add_u32 s%d, s%d, %d" % (sT2, sP2, 2 * (n - 14)))
            e("s_and_b32 s%d, s%d, 7" % (sT2, sT2))
            e("s_lshl_b32 s%d, s%d, 12" % (sD, sT2))
        e("s_add_u32 s%d, s%d, s%d" % (sD, sD, sActBase))
    def d(i):
        if i == 0: first()
        dma(SRD_WS, vL16, sD, (sW8, AT(n)) if i == 0 else None, "A%d" % n, imm=i * 1024, sc=["", "sc1", "sc0", "nt"][cfg.asc])
    return [lambda i=i: d(i) for i in range(4)]

def W_dmas(n, sD, own=False):
    srd_ = SRD_W2 if n < 14 else SRD_WO
    def first():
        if n < 14:
            chunk_id(n, sP2, 0)
            e("s_mul_i32 s%d, s%d, %d" % (sD, sT2, 64 * 896))
            e("s_add_u32 s%d, s%d, s%d" % (sD, sD, sWbase))
        else:
            e("s_add_u32 s%d, s%d, %d" % (sT2, sP2, 2 * (n - 14)))
            e("s_and_b32 s%d, s%d, 7" % (sT2, sT2))
            e("s_mul_i32 s%d, s%d, %d" % (sD, sT2, 56 * 896))
            e("s_add_u32 s%d, s%d, s%d" % (sD, sD, sSbase))
    def d(i):
        if i == 0: first()
        dma(srd_, vW2d + i, sD, (sW8, WT(n)) if (i == 0 or own) else None, "W%d" % n, imm=i * 1024)
    return [lambda i=i: d(i) for i in range(4)]

def p2_issue_A(n):
    for f in A_dmas(n, sT0): f()
def p2_issue_W(n):
    for f in W_dmas(n, sT0): f()

def producer_setup():
    e("s_mov_b32 s%d, 0" % sDone)
    e("s_and_b32 s%d, s%d, 3" % (sT3, sWave))
    e("s_lshr_b32 s%d, s%d, 1" % (sT1, sT3))
    e("s_add_u32 s%d, s%d, s%d" % (sP2, sRot2, sT1))
    e("s_and_b32 s%d, s%d, 1" % (sT0, sT3))
    e("s_lshl_b32 s%d, s%d, 12" % (sW8, sT3))
    e("s_lshl_b32 s%d, s%d, 7" % (sT1, sCB))
    e("s_mul_i32 s%d, s%d, %d" % (sT2, sT0, 32 * 896))
    e("s_add_u32 s%d, s%d, s%d" % (sWbase, sT1, sT2))
    e("s_mul_i32 s%d, s%d, %d" % (sT2, sT0, 28 * 896))
    e("s_add_u32 s%d, s%d, s%d" % (sSbase, sT1, sT2))
    e("s_lshl_b32 s%d, s%d, 1" % (sT1, sTB))
    e("s_add_u32 s%d, s%d, s%d" % (sT0, sT0, sT1))
    e("s_mul_i32 s%d, s%d, %d" % (sActBase, sT0, TG_STRIDE))

def srd(d, p, n):
    e("s_mov_b32 s%d, s%d" % (d, p)); e("s_mov_b32 s%d, s%d" % (d + 1, p + 1))
    e("s_mov_b32 s%d, %d" % (d + 2, n)); e("s_mov_b32 s%d, 0x20000" % (d + 3))

def tables(us, wstep):
    for u in us:
        e("s_cmp_ge_u32 s%d, %d" % (sRot, 7 - u))
        e("s_cselect_b32 s%d, s%d, s%d" % (sXc + u, sT1, sT0))
        e("s_cselect_b32 s%d, s%d, s%d" % (sWc + u, sT3, sT2))
        if u:
            e("s_add_u32 s%d, s%d, %d" % (sXc + u, sXc + u, 128 * u))
            e("s_add_u32 s%d, s%d, %d" % (sWc + u, sWc + u, wstep * u))

def x_dma(u, base):
    def f0(): dma(SRD_X, vXd0, sXc + u, (sLdsX, base), "c%d" % u)
    def f1(): dma(SRD_X, vXd1, sXc + u, (sLdsX, base), "c%d" % u, imm=1024)
    return [f0, f1]

def tr_addr(d, mulhalf_sreg, rowreg, T):
    e("v_add_u32 v%d, s%d, v%d" % (T + 14, mulhalf_sreg, T + 12))
    e("v_lshrrev_b32 v%d, 1, v%d" % (T + 1, T + 14))
    e("v_and_b32 v%d, 2, v%d" % (T + 2, T + 9))
    e("v_lshlrev_b32 v%d, 1, v%d" % (T + 2, T + 2))
    e("v_xor_b32 v%d, v%d, v%d" % (T + 1, T + 1, T + 2))
    e("v_and_b32 v%d, 1, v%d" % (T + 14, T + 14))
    e("v_lshlrev_b32 v%d, 3, v%d" % (T + 14, T + 14))
    e("v_lshl_add_u32 v%d, v%d, 4, v%d" % (T + 14, T + 1, T + 14))
    e("v_lshl_add_u32 v%d, v%d, 7, v%d" % (d, rowreg, T + 14))

def setup_min(att):
    T = TMP
    e("s_and_b32 s%d, s%d, 3" % (sTG, sWave))
    e("s_lshr_b32 s%d, s%d, 2" % (sHalf, sWave))
    e("v_and_b32 v%d, 31, v%d" % (T + 6, vLane))
    e("v_lshrrev_b32 v%d, 5, v%d" % (T + 7, vLane))
    e("v_bfe_u32 v%d, v%d, 1, 3" % (T + 8, vLane))
    e("v_xor_b32 v%d, v%d, v%d" % (T + 8, T + 8, T + 7))
    e("v_lshlrev_b32 v%d, 4, v%d" % (T + 8, T + 8))
    e("v_lshl_add_u32 v%d, v%d, 7, v%d" % (T + 8, T + 6, T + 8))
    e("s_lshl_b32 s%d, s%d, 12" % (sT4, sTG))
    e("s_add_u32 s%d, s%d, %d" % (sT4, sT4, AS[0]))
    e("s_mul_i32 s%d, s%d, %d" % (sT0, sHalf, 7 if att else 8))
    for s in range(4):
        e("v_xor_b32 v%d, %d, v%d" % (vXr + s, s << 5, T + 8))
        e("v_add_u32 v%d, s%d, v%d" % (vXr + s, sT4, vXr + s))
    e("v_bfe_u32 v%d, v%d, 2, 2" % (T + 9, vLane))
    e("v_and_b32 v%d, 3, v%d" % (T + 10, vLane))
    e("v_bfe_u32 v%d, v%d, 4, 1" % (T + 11, vLane))
    e("v_lshl_add_u32 v%d, v%d, 2, v%d" % (T + 12, T + 11, T + 10))
    e("v_lshl_add_u32 v%d, v%d, 3, v%d" % (T + 13, T + 7, T + 9))
    tr_addr(vTr2, sT0, T + 13, T)
    e("v_add_u32 v%d, %d, v%d" % (vTr, AS[0] + 16384, vTr2))
    e("v_lshlrev_b32 v%d, 2, v%d" % (T + 14, vLane))
    e("ds_write_b32 v%d, v%d offset:%d" % (T + 14, vZero, MISC))

def setup_pieces():
    T = TMP
    def p0():
        srd(SRD_WS, sWS, WS_BYTES)
        e("v_lshlrev_b32 v%d, 4, v%d" % (vL16, vLane))
        e("s_lshl_b32 s%d, s%d, 2" % (sT4, sRB))
        e("s_add_u32 s%d, s%d, s%d" % (sT4, sT4, sTG))
        e("s_mul_i32 s%d, s%d, %d" % (sActBase, sT4, TG_STRIDE))
    def p1():
        e("s_lshr_b32 s%d, s2, 3" % sT3)
        e("s_mul_i32 s%d, s%d, 37" % (sT4, sT3))
        e("s_lshr_b32 s%d, s%d, 8" % (sT4, sT4))
        e("s_mul_i32 s%d, s%d, 7" % (sT5, sT4))
        e("s_sub_u32 s%d, s%d, s%d" % (sCB, sT3, sT5))
        e("s_and_b32 s%d, s2, 7" % sT0)
        e("s_lshl_b32 s%d, s%d, 2" % (sTB, sT0))
        e("s_add_u32 s%d, s%d, s%d" % (sTB, sTB, sT4))
        e("s_add_u32 s%d, s%d, s%d" % (sRot2, sCB, sT4))
        e("s_lshl_b32 s%d, s%d, 1" % (sRot2, sRot2))
        if cfg.rot2 == 0: e("s_mov_b32 s%d, 0" % sRot2)
        if cfg.rot2 == 3:
            e("s_and_b32 s%d, s2, 7" % sRot2)
            e("s_lshl_b32 s%d, s%d, 1" % (sRot2, sRot2))
        if cfg.rot2 == 4:
            e("s_and_b32 s%d, s2, 1" % sT5)
            e("s_lshl_b32 s%d, s%d, 1" % (sT5, sT5))
            e("s_add_u32 s%d, s%d, s%d" % (sRot2, sRot2, sT5))
        if cfg.rot2 == 2: e("s_and_b32 s%d, s%d, 2" % (sRot2, sRot2))
    def p2():
        e("s_lshr_b32 s%d, s%d, 1" % (sT1, sTB))
        e("s_mul_i32 s%d, s%d, %d" % (sPark, sWave, 8 * 896))
        e("s_lshl_b32 s%d, s%d, 7" % (sT0, sCB))
        e("s_add_u32 s%d, s%d, s%d" % (sPark, sPark, sT0))
        e("s_lshl_b32 s%d, s%d, 9" % (sSlot, sT1))
        e("s_add_u32 s%d, s%d, %d" % (sSlot, sSlot, WS_FR))
        e("s_lshl_b32 s%d, s%d, 8" % (sSlotH, sJ))
        e("s_add_u32 s%d, s%d, %d" % (sSlotH, sSlotH, WS_FH))
    def p3():
        srd(SRD_W2, sW2, 1792 * 896); srd(SRD_WO, sWO, 448 * 896)
    def p4():
        e("s_mov_b32 s%d, 0x3fb8aa3b" % sL2); e("s_mov_b32 s%d, 0x3fb8aa3b" % (sL2 + 1))
        e("s_mov_b32 s%d, 0x358637bd" % sEp); e("s_mov_b32 s%d, 0x358637bd" % (sEp + 1))
        e("v_and_b32 v%d, 15, v%d" % (vFl, vLane))
        e("v_lshlrev_b32 v%d, 3, v%d" % (vFl, vFl))
        e("v_lshlrev_b32 v%d, 6, v%d" % (vTrS, T + 13))
        e("v_lshl_add_u32 v%d, v%d, 3, v%d" % (vTrS, T + 12, vTrS))
        e("v_add_u32 v%d, %d, v%d" % (vTrS, SR, vTrS))
    def p5():
        e("v_lshl_add_u32 v%d, v%d, 2, v%d" % (T + 4, T + 7, T + 9))
        e("s_and_b32 s%d, s%d, 1" % (sT0, sWave))
        e("s_lshl_b32 s%d, s%d, 3" % (sT1, sT0))
        tr_addr(vWlo, sT1, T + 4, T)
        e("v_add_u32 v%d, %d, v%d" % (vWhi, 7 * 16384, vWlo))
        e("v_add_u32 v%d, %d, v%d" % (vWlo, 4 * 16384, vWlo))
    def p6():
        e("s_and_b32 s%d, s%d, 1" % (sT0, sWave))
        e("s_bfe_u32 s%d, s%d, 0x10001" % (sT1, sWave))
        e("s_lshl_b32 s%d, s%d, 12" % (sT2, sT1))
        e("v_add_u32 v%d, s%d, v%d" % (vAr, sT2, vL16))
        e("s_lshl_b32 s%d, s%d, 1" % (sT2, sTB))
        e("s_add_u32 s%d, s%d, s%d" % (sT2, sT2, sT1))
        e("s_mul_i32 s%d, s%d, %d" % (sOutB, sT2, 32 * 896))
        e("s_lshl_b32 s%d, s%d, 7" % (sT3, sCB))
        e("s_add_u32 s%d, s%d, s%d" % (sOutB, sOutB, sT3))
        e("s_lshl_b32 s%d, s%d, 6" % (sT0, sT0))
        e("s_add_u32 s%d, s%d, s%d" % (sOutB, sOutB, sT0))
        if cfg.glds:
            e("s_lshl_b32 s%d, s%d, 7" % (sT2, sT1))
        else:
            e("s_lshl_b32 s%d, s%d, 7" % (sT2, sT2))
            e("s_add_u32 s%d, s%d, %d" % (sT2, sT2, WS_G))
        e("v_lshl_add_u32 v%d, v%d, 2, s%d" % (vG, T + 6, sT2))
    def p7():
        e("v_mul_u32_u24 v%d, 896, v%d" % (vOut, T + 6))
        e("v_lshl_add_u32 v%d, v%d, 4, v%d" % (vOut, T + 7, vOut))
        e("v_mul_u32_u24 v%d, 896, v%d" % (T + 3, T))
        e("v_lshl_add_u32 v%d, v%d, 4, v%d" % (vW2d, T + 5, T + 3))
        for i in range(1, 4):
            e("v_add_u32 v%d, %d, v%d" % (vW2d + i, i * (8 * 896 - 1024), vW2d))
    return [p0, p1, p2, p3, p4, p5, p6, p7]

def first_part(att):
    T = TMP
    stride = 2688 if att else 3584
    e("s_mul_i32 s%d, s%d, %d" % (sT0, sRB, 128 * 896))
    e("s_lshl_b32 s%d, s%d, 7" % (sT1, sRot))
    e("s_add_u32 s%d, s%d, s%d" % (sT0, sT0, sT1))
    e("s_sub_u32 s%d, s%d, 896" % (sT1, sT0))
    e("s_mul_i32 s%d, s%d, %d" % (sT2, sRot, 64 * stride))
    e("s_mul_i32 s%d, s%d, %d" % (sT3, sJ, 112 if att else 448))
    e("s_add_u32 s%d, s%d, s%d" % (sT2, sT2, sT3))
    e("s_sub_u32 s%d, s%d, %d" % (sT3, sT2, 7 * 64 * stride))
    tables(range(7), 64 * stride)
    e("v_lshl_add_u32 v%d, s%d, 3, v%d" % (T + 3, sWave, T))
    e("v_mul_u32_u24 v%d, %d, v%d" % (T + 3, stride, T + 3))
    if att:
        e("v_min_u32 v%d, 6, v%d" % (T + 4, T + 5))
        e("v_lshl_add_u32 v%d, v%d, 4, v%d" % (vWd, T + 4, T + 3))
    else:
        e("s_and_b32 s%d, s%d, 1" % (sT5, sJ))
        e("s_lshl_b32 s%d, s%d, 6" % (sT4, sT5))
        e("v_lshl_add_u32 v%d, v%d, 4, v%d" % (vWd, T + 5, T + 3))
        e("v_add_u32 v%d, s%d, v%d" % (vWd, sT4, vWd))
        e("s_cmp_eq_u32 s%d, 0" % sT5)
        e("s_cselect_b32 s%d, 384, 0" % sT5)
        e("s_and_b32 s%d, s%d, 3" % (sT4, sWave))
        e("s_mul_i32 s%d, s%d, %d" % (sT4, sT4, 16 * 3584))
        e("s_add_u32 s%d, s%d, s%d" % (sT4, sT4, sT5))
        e("v_lshrrev_b32 v%d, 2, v%d" % (T + 3, vLane))
        e("v_mul_u32_u24 v%d, 3584, v%d" % (T + 3, T + 3))
        e("v_and_b32 v%d, 3, v%d" % (T + 4, vLane))
        e("v_lshl_add_u32 v%d, v%d, 4, v%d" % (vSd, T + 4, T + 3))
        e("v_add_u32 v%d, s%d, v%d" % (vSd, sT4, vSd))
    e("s_waitcnt lgkmcnt(0)")
    if cfg.ksplit:
        e("s_load_dwordx4 s[20:23], s[0:1], 64")
        e("s_load_dwordx2 s[24:25], s[0:1], 80")
    e("s_lshl_b32 s%d, s%d, 10" % (sLdsW, sWave))
    e("s_lshl_b32 s%d, s%d, 11" % (sLdsX, sWave))
    srd(SRD_X, sX, 2048 * 896)
    if att: srd(SRD_W, sWQKV, 448 * 2688)
    else: srd(SRD_W, sW1, 448 * 3584)

def publish_nonce():
    e("s_or_b32 s%d, s2, s%d" % (sT4, sWave))
    def f():
        e("s_lshl_b64 s[%d:%d], s[%d:%d], 2" % (sNonce, sNonce + 1, sNonce, sNonce + 1))
        e("s_or_b32 s%d, s%d, 0x40000000" % (sNonce + 1, sNonce + 1))
        e("v_mov_b32 v%d, s%d" % (PK, sNonce))
        e("v_mov_b32 v%d, s%d" % (PK + 1, sNonce + 1))
        e("s_mov_b64 exec, 1")
        e("global_store_dwordx2 v%d, %s, s[%d:%d] sc0 sc1" % (vZero, R(PK, 2), sDBG, sDBG + 1))
        e("s_mov_b64 exec, -1")
    cond("s_cmp_lg_u32 s%d, 0" % sT4, f)

def addr_step(regs, delta):
    for r in regs:
        e("v_add_u32 v%d, 0x%x, v%d" % (r, delta & 0xffffffff, r))

def chunk_dmas(u, att):
    b = AS[u % 3]
    c0, c1 = (896, 1792) if att else (0, 128)
    L = x_dma(u, b)
    L.append(lambda: dma(SRD_W, vWd, sWc + u, (sLdsW, b + 16384 - c0), "c%d" % u, imm=c0))
    L.append(lambda: dma(SRD_W, vWd, sWc + u, (sLdsW, b + 24576 - c1), "c%d" % u, imm=c1))
    return L

def bias_frag(breg):
    e("v_mov_b32 v%d, v%d" % (TMP + 20, breg))
    e("s_nop 1")

def stream(att, extra):
    items = []; bnd = {}; fill = {}
    for u in range(7):
        def boundary(u=u):
            g.wait("c%d" % u, lgkm0=True)
            barrier()
            if u: addr_step([vXr, vXr + 1, vXr + 2, vXr + 3, vTr], AS[u % 3] - AS[(u - 1) % 3])
            for s in range(4):
                g.ds("ds_read_b128 %s, v%d" % (R(16 * u + 4 * s, 4, "a"), vXr + s), "x")
            g.lazy(1 if u == 0 else 57 + u)
        bnd[len(items)] = boundary
        lo = len(items)
        for t in range(2):
            for s in range(4):
                k = len(items); w = 64 + 4 * (k % 8)
                def rd(k=k, w=w, t=t, s=s):
                    o = t * 8192 + s * 2048
                    ar = vTr
                    g.ds("ds_read_b64_tr_b16 %s, v%d offset:%d" % (R(w, 2), ar, o), k)
                    g.ds("ds_read_b64_tr_b16 %s, v%d offset:%d" % (R(w + 2, 2), ar, o + 512), k)
                def mf(k=k, w=w, t=t, s=s, u=u):
                    if not att and u == 2 and s == 0:
                        bias_frag(vFlag + t)
                        mfma(R(ACC[t], 16), R(TMP + 20), R(TMP + 16), R(ACC[t], 16))
                    g.lwait(k)
                    X = R(16 * u + 4 * s, 4, "a"); C = "0" if (u == 0 and s == 0) else R(ACC[t], 16)
                    if att: mfma(R(ACC[t], 16), X, R(w), C)
                    else: mfma(R(ACC[t], 16), R(w), X, C)
                items.append((rd, mf))
        hi = len(items)
        fl = chunk_dmas(u + 2, att) if u <= 4 else []
        ex = extra.get(u, [])
        mix = []
        for i in range(max(len(fl), len(ex))):
            if i < len(fl): mix.append(fl[i])
            if i < len(ex): mix.append(ex[i])
        spread(fill, mix, max(lo - 4 + cfg.bd1, 0), (hi - 4 + cfg.bd1) if u < 6 else hi)
    pipe(items, 4, bnd, fill, cfg.bd1)

def tile_items(acc, areg, rowbytes, base, bias):
    items = []
    for k in range(28):
        w = 64 + 4 * (k % 8)
        ar = areg if isinstance(areg, int) else areg[k >= 16]
        def rd(k=k, w=w, ar=ar):
            g.ds("ds_read_b64_tr_b16 %s, v%d offset:%d" % (R(w, 2), ar, base + k * 16 * rowbytes), k)
            g.ds("ds_read_b64_tr_b16 %s, v%d offset:%d" % (R(w + 2, 2), ar, base + (k * 16 + 4) * rowbytes), k)
        def mf(k=k, w=w):
            if k == 0 and bias is not None:
                bias_frag(bias)
                mfma(R(acc, 16), R(TMP + 20), R(TMP + 16), "0")
            g.lwait(k)
            mfma(R(acc, 16), R(w), R(4 * k, 4, "a"), "0" if (k == 0 and bias is None) else R(acc, 16))
        items.append((rd, mf))
    return items

def tile(acc, areg, rowbytes, base, bias=None, bnd=None, fill=None, pre=False):
    items = tile_items(acc, areg, rowbytes, base, bias)
    if pre: items = [((lambda: None) if k < cfg.td else rd, mf) for k, (rd, mf) in enumerate(items)]
    if cfg.prio == 3: e("s_setprio 1")
    pipe(items, cfg.td, bnd or {}, fill or {}, 0)
    if cfg.prio == 3: e("s_setprio 0")

def tile_pre(areg, rowbytes, base):
    for rd, mf in tile_items(0, areg, rowbytes, base, None)[:cfg.td]: rd()

def addf(fill, pos, *fns):
    fill.setdefault(pos, []).extend(fns)

def wtouch():
    def f():
        lb = g.newlab("L_wt")
        e("s_cmp_ge_u32 s2, 196")
        e("s_cselect_b32 s%d, s%d, s%d" % (sT0, sWO, sW2))
        e("s_cselect_b32 s%d, s%d, s%d" % (sT1, sWO + 1, sW2 + 1))
        e("s_cselect_b32 s%d, 196, 0" % sT2)
        e("s_sub_u32 s%d, s2, s%d" % (sT2, sT2))
        e("s_lshl_b32 s%d, s%d, 13" % (sT2, sT2))
        e("v_lshl_add_u32 v%d, v%d, 7, s%d" % (143, vLane, sT2))
        e("s_cmp_ge_u32 s2, 245")
        e("s_cbranch_scc1 %s" % lb)
        e("global_load_dword v%d, v%d, s[%d:%d]" % (143, 143, sT0, sT1))
        g.lab(lb)
    only_wave(2, f)

def parks(ns): return [lambda n=n, h=h: park(n, h) for n in ns for h in (0, 1)]

def setprio(p):
    if cfg.prio == 2: e("s_setprio %d" % p)

def nop(): pass

def ffn_path():
    T = TMP
    for f in chunk_dmas(0, False): f()
    if cfg.c0bar: barrier()
    setup_min(False)
    for f in chunk_dmas(1, False): f()
    P = setup_pieces()
    def b0():
        e("s_mul_i32 s%d, s%d, 7" % (sT4, sJ))
        e("s_and_b32 s%d, s%d, 1" % (sT5, sJ))
        e("s_add_u32 s%d, s%d, s%d" % (sTile0, sT4, sT5))
        e("s_add_u32 s%d, s%d, s%d" % (sTile0, sTile0, sHalf))
        e("s_add_u32 s%d, s%d, 4" % (sTileP, sTile0))
        e("s_cmp_eq_u32 s%d, 0" % sT5)
        e("s_cselect_b32 s%d, 6, 0" % sT5)
        e("s_add_u32 s%d, s%d, s%d" % (sTileS, sT4, sT5))
        srd(SRD_OUT, sB1, 3584)
    def b1():
        e("v_lshlrev_b32 v%d, 1, v%d" % (T + 15, T + 6))
        e("v_lshl_add_u32 v%d, v%d, 12, v%d" % (T + 15, T + 7, T + 15))
        e("s_lshl_b32 s%d, s%d, 6" % (sT0, sTile0))
        e("s_lshl_b32 s%d, s%d, 6" % (sT1, sTileS))
        e("s_lshl_b32 s%d, s%d, 6" % (sT2, sTileP))
        for r, so, o in ((vFlag, sT0, 0), (vFlag + 1, sT0, 128), (vGate, sT2, 0), (vGate + 1, sT1, 0)):
            g.vm("buffer_load_ushort v%d, v%d, s[%d:%d], s%d offen offset:%d" % (r, T + 15, SRD_OUT, SRD_OUT + 3, so, o), "bias")
    def b2():
        for i in range(16, 24): e("v_mov_b32 v%d, %s" % (T + i, "0x3f80" if i == 16 else "0"))
    def b3():
        for r in (sTile0, sTileS, sTileP):
            e("s_lshl_b32 s%d, s%d, 11" % (r, r))
            e("s_add_u32 s%d, s%d, s%d" % (r, r, sActBase))
    def spf():
        nr = 7 if cfg.map else 4
        e("s_and_b32 s%d, s%d, %d" % (sT0, sRB, 3 if cfg.map else 7))
        e("s_lshl_b32 s%d, s%d, 1" % (sT0, sT0))
        e("s_and_b32 s%d, s%d, 1" % (sT1, sJ))
        e("s_add_u32 s%d, s%d, s%d" % (sT0, sT0, sT1))
        e("s_lshl_b32 s%d, s%d, 3" % (sT0, sT0))
        e("s_add_u32 s%d, s%d, s%d" % (sT0, sT0, sWave))
        e("s_mul_i32 s%d, s%d, %d" % (sT0, sT0, nr * 3584))
        e("s_lshr_b32 s%d, s%d, 1" % (sT1, sJ))
        e("s_mul_i32 s%d, s%d, 896" % (sT1, sT1))
        e("s_add_u32 s%d, s%d, s%d" % (sT0, sT0, sT1))
        e("v_mul_u32_u24 v%d, 3584, v%d" % (T + 15, vLane))
        e("s_mov_b64 exec, %d" % ((1 << nr) - 1))
        g.vm("buffer_load_dword v%d, v%d, s[%d:%d], s%d offen offset:384" % (vPoll, T + 15, SRD_W, SRD_W + 3, sT0), "spf")
        e("s_mov_b64 exec, -1")
    b0(); b1()
    def p2page(u):
        e("s_add_u32 s%d, s%d, 256" % (sT0, sWc + u))
        dma(SRD_W, vWd, sT0, (sLdsW, QR + u * 8192), "p2")
    pp = lambda u: (lambda: p2page(u))
    extra = {0: ([publish_nonce] if cfg.ksplit else []) + [b2, P[0], b3] + ([spf] if cfg.spf else []), 1: [P[1], P[2]], 2: [nonce_issue, P[3], P[4]],
             3: [P[5], P[6], lambda: srd(SRD_OUT, sOUT, 2048 * 896)],
             4: [P[7]], 5: [pp(0), pp(1), nonce_get, pp(2), pp(3)], 6: [pp(4), pp(5), pp(6), producer_setup]}
    if cfg.wpf: extra[cfg.wpf - 1].append(wtouch)
    stream(False, extra)
    g.stamp(2)
    O = 32 * 1024
    e("s_nop 3")
    epi_mish(ACC[0], sTile0, O, "st0", pk=cfg.pk0)
    g.stamp(34)
    H0 = g.save()
    e("s_cmp_lg_u32 s%d, 0" % sHalf)
    e("s_cbranch_scc1 L_ffnB")
    def sig(tag, c, stage):
        def a(): g.wait(tag); signal1(c)
        return [a, lambda: signal2(8, "FR", stage)]
    sD = sPark
    wp = [int(c) for c in "%04d" % cfg.wp]
    def Wseg(k):
        L = []
        for m in range(4):
            if wp[m] == k: L += W_dmas(m, sD, True)
        return L
    def slots(n, lo, fns):
        fl = [[] for _ in range(n)]
        for i, f in enumerate(fns): fl[lo + (i * (n - lo)) // len(fns)].append(f)
        return fl
    def mk(fl): return [(lambda l=l: [f() for f in l]) for l in fl]
    def a01():
        for n in range(2): p2_issue_A(n)
    Sd = [lambda u=u: dma(SRD_W, vSd, sWc + u, (sLdsW, SR + u * 4096), "S") for u in range(7)]
    for f in Sd[:cfg.spre]: f()
    g.wait("p2"); barrier(); g.stamp(3)
    fill = {}
    spread(fill, Sd[cfg.spre:], 0, cfg.sspan)
    s1 = sig("st0", 0, 1)
    addf(fill, cfg.f1a, s1[0]); addf(fill, min(cfg.f1a + 3, 27), s1[1])
    tile(ACC[0], vTr2, 128, QR, bias=vGate, fill=fill)
    g.stamp(35)
    fl = slots(16, 0, Wseg(6))
    epi_mish(ACC[1], sTile0, O + 4096, "st1", pk=cfg.pk1, fills=mk(fl))
    g.stamp(36)
    g.wait("S", must=False); barrier(); g.lazy(5)
    fill = {}
    s2 = sig("st1", 1, 2)
    addf(fill, cfg.f2a, s2[0]); addf(fill, min(cfg.f2a + 3, 27), s2[1])
    tile(ACCX, vTrS, 64, 0, bias=vGate + 1, fill=fill)
    g.stamp(37)
    jobs = [(mish_ops(ACCX, sTileS, O, "st4", False), cfg.eslo, cfg.eshi)]
    if cfg.d2: jobs.append((mish_ops(ACC[0], sTileP, O, "st2", False), cfg.e2lo, cfg.e2hi))
    else: epi_mish(ACC[0], sTileP, O, "st2", pk=True)
    g.stamp(38)
    g.wait("W0", must=False)
    consumers(jobs, {}, {1: ["W1"], 2: ["W2"], 3: ["W3"], cfg.f3 + 100: ["st2"], cfg.f4 + 100: ["st4"]})
    g.lab("L_ffnB"); g.load(H0); g.lq = []
    g.wait("p2"); barrier(); g.stamp(3)
    fl = slots(16, cfg.w2lo, Wseg(2)) + [[]]
    s1 = sig("st0", 0, 1)
    fl[cfg.f1b].append(s1[0]); fl[min(cfg.f1b + 1, 16)].append(s1[1])
    fl[16].append(lambda: tile_pre(vTr2, 128, QR))
    epi_mish(ACC[1], sTile0, O + 4096, "st1", pk=cfg.pk1, fills=mk(fl))
    g.lazy(35)
    fill = {}
    spread(fill, Wseg(3), cfg.wlo, cfg.whi)
    if cfg.peek:
        addf(fill, 0, poll_clear)
        for i in range(cfg.bsn): addf(fill, cfg.bs1 + (i * (28 - cfg.bs1)) // cfg.bsn, sample)
    else: addf(fill, cfg.bs1, sample)
    s2 = sig("st1", 1, 2)
    addf(fill, 24, s2[0]); addf(fill, 27, s2[1])
    tile(ACC[0], vTr2, 128, QR, bias=vGate, fill=fill, pre=True)
    g.stamp(36)
    barrier(); g.lazy(5)
    mfma_fence()
    fl = slots(16, cfg.w4lo, Wseg(4))
    if cfg.peek:
        try_issue(a01, False, stampi=7, peek=True)
        for i in range(1, cfg.bcn): fl[(i * 16) // cfg.bcn - 1].insert(0, lambda: try_issue(a01, False, stampi=7, peek=True))
    else: fl[cfg.bcp].insert(0, lambda: try_issue(a01, False, stampi=7))
    epi_mish(ACC[0], sTileP, O, "st2", pk=cfg.pk1, fills=mk(fl))
    g.stamp(38)
    try_issue(a01, True, stampi=7)
    for f in Wseg(5): f()
    g.wait(["A0", "W0"])
    producers(False, {}, 2, [m for m in range(18) if m >= 4 or wp[m] == 9])

def pq_pads(P=PK):
    e("s_mov_b32 exec_lo, 0")
    e("v_mov_b32 v%d, 0" % (P + 6)); e("v_mov_b32 v%d, 0" % (P + 7))
    e("s_mov_b64 exec, -1")

def o_regs(other): return (64, 80, ACC[0]) if other else (TMP, TMP + 16, PK)

def o_reads(other=False):
    T, PV, P = o_regs(other)
    if other:
        e("s_lshl_b32 s%d, s%d, 11" % (sT2, sTG))
        e("v_add_u32 v%d, s%d, v%d" % (PV + 1, sT2, vL16))
        g.ds("ds_read_b128 %s, v%d offset:%d" % (R(P), PV + 1, PQX), "okv2")
        g.ds("ds_read_b128 %s, v%d offset:%d" % (R(P + 4), PV + 1, PQX + 1024), "okv2")
        e("s_mov_b32 s%d, %d" % (sT2, MISC + 4096))
    else:
        e("s_lshl_b32 s%d, s%d, 12" % (sT2, sHalf))
        e("s_add_u32 s%d, s%d, %d" % (sT2, sT2, MISC))
    e("v_lshl_add_u32 v%d, v%d, 2, s%d" % (PV, vLane, sT2))
    for i in range(8):
        g.ds("ds_read2st64_b32 %s, v%d offset0:%d offset1:%d" % (R(T + 2 * i, 2), PV, 2 * i, 2 * i + 1), "okv2" if other else "okv")

def o_ops(other=False):
    T, PV, P = o_regs(other)
    L = []
    def op(t): L.append((1 if t.startswith("s_") else 4, lambda: e(t)))
    L.append((1, lambda: g.lwait("okv2" if other else "okv")))
    for i in range(8):
        op("v_cvt_pk_bf16_f32 v%d, v%d, v%d" % (PV + i, T + 2 * i, T + 2 * i + 1))
    op("s_nop 1")
    L.append((16, lambda: mfma(R(T, 16), R(PV), R(P), "0")))
    L.append((16, lambda: mfma(R(T, 16), R(PV + 4), R(P + 4), R(T, 16))))
    if not other:
        op("s_lshl_b32 s%d, s%d, 2" % (sT1, sRB))
        op("s_add_u32 s%d, s%d, s%d" % (sT1, sT1, sTG))
        op("s_mul_i32 s%d, s%d, %d" % (sT1, sT1, TG_STRIDE))
        op("s_lshl_b32 s%d, s%d, 1" % (sT0, sJ))
        op("s_add_u32 s%d, s%d, s%d" % (sT0, sT0, sHalf))
        op("s_lshl_b32 s%d, s%d, 11" % (sT0, sT0))
        op("s_add_u32 s%d, s%d, s%d" % (sT0, sT0, sT1))
        op("s_nop 6")
    else:
        op("s_nop 7"); op("s_nop 5")
    op("v_mov_b32 v%d, v%d" % (PV, T + 12))
    op("v_mov_b32 v%d, v%d" % (PV + 1, T + 12))
    op("s_nop 1")
    op("v_permlane32_swap_b32 v%d, v%d" % (PV, PV + 1))
    op("s_nop 1")
    op("v_add_f32 v%d, s%d, v%d" % (PV + 1, sEps, PV + 1))
    op("v_rcp_f32 v%d, v%d" % (PV + 1, PV + 1))
    op("s_nop 0")
    for i in range(16):
        op("v_mul_f32 v%d, v%d, v%d" % (T + i, T + i, PV + 1))
    for i in range(8):
        op("v_cvt_pk_bf16_f32 v%d, v%d, v%d" % (P + i, T + 2 * i, T + 2 * i + 1))
    L.append((8, lambda: pq_pads(P)))
    for h in range(2):
        L.append((5, lambda h=h: g.vm("buffer_store_dwordx4 %s, v%d, s[%d:%d], s%d offen offset:%d sc0 sc1" % (R(P + 4 * h), vL16, SRD_WS, SRD_WS + 3, sT0, 1024 * h + (2048 if other else 0)), "so")))
    return L

def o_compute():
    g.lq = []
    o_reads()
    for c, f in o_ops(): f()

def kv_load():
    e("s_lshl_b32 s%d, s%d, 13" % (sT0, sJ))
    e("s_lshl_b32 s%d, s%d, 11" % (sT1, sTG))
    e("s_add_u32 s%d, s%d, s%d" % (sT0, sT0, sT1))
    e("s_add_u32 s%d, s%d, %d" % (sT0, sT0, WS_KV))
    dma(SRD_WS, vL16, sT0, (sT1, MISC), "kvl", sc="sc1")
    dma(SRD_WS, vL16, sT0, None, "kvl", imm=1024, sc="sc1")

def q_dma(u):
    e("s_add_u32 m0, s%d, %d" % (sLdsW, QP(u)))
    e("s_mov_b32 exec_lo, 0xf7f77f7f"); e("s_mov_b32 exec_hi, 0xf7f77f7f")
    g.vm("buffer_load_dwordx4 v%d, s[%d:%d], s%d offen lds" % (vWd, SRD_W, SRD_W + 3, sWc + u), "Q%d" % u)
    e("s_mov_b64 exec, -1")

def att_path():
    T = TMP
    for f in chunk_dmas(0, True): f()
    if cfg.c0bar: barrier()
    setup_min(True)
    for f in chunk_dmas(1, True): f()
    P = setup_pieces()
    e("s_add_u32 s%d, s%d, s%d" % (sT0, sWave, sRot))
    e("s_cmp_ge_u32 s%d, 7" % sT0)
    e("s_cselect_b32 s%d, 7, 0" % sT1)
    e("s_sub_u32 s%d, s%d, s%d" % (sT0, sT0, sT1))
    e("s_lshl_b32 s%d, s%d, 7" % (sT0, sT0))
    e("v_lshl_add_u32 v%d, v%d, 1, s%d" % (T + 15, vLane, sT0))
    g.vm("global_load_ushort v%d, v%d, s[%d:%d]" % (vGate, T + 15, sGATE, sGATE + 1), "gate")
    def zero_kv():
        for i in range(4): e("v_mov_b32 v%d, 0" % (T + 16 + i))
        e("s_lshl_b32 s%d, s%d, 13" % (sT0, sJ))
        e("s_lshl_b32 s%d, s%d, 9" % (sT1, sRB))
        e("s_add_u32 s%d, s%d, s%d" % (sT0, sT0, sT1))
        e("s_add_u32 s%d, s%d, %d" % (sT0, sT0, WS_KV))
        e("s_mov_b32 exec_hi, 0")
        e("buffer_store_dwordx4 %s, v%d, s[%d:%d], s%d offen sc0 sc1" % (R(T + 16), vL16, SRD_WS, SRD_WS + 3, sT0))
        e("s_mov_b64 exec, -1")
    def a0():
        e("v_cmp_eq_u32 vcc, 28, v%d" % (T + 6))
        e("v_mov_b32 v%d, 0x3f803f80" % (T + 20))
        e("v_mov_b32 v%d, 0" % (vGate + 1))
        e("v_cndmask_b32 v%d, 0, v%d, vcc" % (vVpad, T + 20))
        e("v_bfe_u32 v%d, v%d, 1, 1" % (T + 21, vLane))
        e("v_lshlrev_b32 v%d, 6, v%d" % (T + 21, T + 21))
        e("v_xor_b32 v%d, 0x70, v%d" % (T + 21, T + 21))
        e("v_lshl_add_u32 v%d, v%d, 7, v%d" % (T + 21, vLane, T + 21))
        e("s_lshl_b32 s%d, s%d, 13" % (sT0, sWave))
        e("s_cmp_lt_u32 s%d, 4" % sWave)
        e("s_cselect_b32 s%d, %d, 0" % (sT1, QP(0)))
        e("s_add_u32 s%d, s%d, s%d" % (sT0, sT0, sT1))
        e("v_add_u32 v%d, s%d, v%d" % (T + 21, sT0, T + 21))
        e("s_cmp_eq_u32 s%d, 0" % sJ)
        e("s_cselect_b32 s%d, s%d, 99" % (sGW, sWave))
    def gate_write(w):
        cond("s_cmp_lg_u32 s%d, %d" % (sGW, w), lambda: e("ds_write_b64 v%d, %s" % (T + 21, R(vGate, 2))))
    def zflag():
        nonce_get()
        only_wave(1, lambda: write_flag("FH", 1))
    qq = lambda p: (lambda: q_dma(p))
    gw = lambda w: (lambda: gate_write(w))
    def psetup():
        producer_setup()
        e("s_cmp_ge_u32 s2, 224")
        e("s_cselect_b32 s%d, 1, 0" % sDone)
    extra = {0: [P[0], lambda: only_wave(1, zero_kv), a0], 1: [P[1], P[2]], 2: [gw(4), P[3], P[4]],
             3: [gw(5), P[5], P[6], lambda: srd(SRD_OUT, sOUT, 2048 * 896)], 4: [gw(6), P[7]],
             5: [qq(0), gw(0), qq(1), qq(2), gw(1), qq(3)],
             6: [lambda: sample(sSlotH, 1), gw(2)] + [qq(p) for p in range(4, 7)] + [gw(3), psetup]}
    extra[cfg.npos].insert(0, nonce_issue)
    if cfg.npos <= 2: extra[4].append(zflag)
    else: extra[5].insert(2, zflag)
    if cfg.wpf: extra[cfg.wpf - 1].append(wtouch)
    stream(True, extra)
    g.stamp(2)
    PV = 64
    e("s_nop 7")
    epi_phi(ACC[0], PK)
    for i in range(8):
        e("v_cvt_pk_bf16_f32 v%d, v%d, v%d" % (PV + i, ACC[1] + 2 * i, ACC[1] + 2 * i + 1))
    e("s_mov_b32 exec_lo, 0xf0000000"); e("s_mov_b32 exec_hi, 0xf0000000")
    for i in range(8):
        e("v_mov_b32 v%d, v%d" % (PV + i, vVpad))
    e("s_mov_b64 exec, -1")
    e("s_nop 1")
    mfma(R(ACC[0], 16), R(PK), R(PV), "0")
    mfma(R(ACC[0], 16), R(PK + 4), R(PV + 4), R(ACC[0], 16))
    e("s_lshl_b32 s%d, s%d, 12" % (sT0, sWave))
    e("s_add_u32 s%d, s%d, %d" % (sT0, sT0, KVSCR))
    e("v_add_u32 v%d, s%d, v%d" % (T, sT0, vL16))
    e("v_add_u32 v%d, %d, v%d" % (vTr, QP(0), vTr2))
    e("s_nop 7"); e("s_nop 1")
    for qd in range(4):
        e("ds_write_b128 v%d, %s offset:%d" % (T, R(ACC[0] + 4 * qd), qd * 1024))
    g.wait("Q2", lgkm0=True, must=False)
    barrier(); g.stamp(3)
    e("s_lshl_b32 s%d, s%d, 14" % (sT0, sHalf))
    e("s_lshl_b32 s%d, s%d, 10" % (sT1, sTG))
    e("s_add_u32 s%d, s%d, s%d" % (sT0, sT0, sT1))
    e("s_add_u32 s%d, s%d, %d" % (sT0, sT0, KVSCR))
    e("v_add_u32 v%d, s%d, v%d" % (T + 16, sT0, vL16))
    for p in range(4):
        e("ds_read_b128 %s, v%d offset:%d" % (R(T + 4 * p), T + 16, p * 4096))
    g.wait("poll")
    poll_check(sSlotH, 1, 0xffff)
    e("s_waitcnt lgkmcnt(0)")
    for i in range(4):
        e("v_add_f32 v%d, v%d, v%d" % (T + i, T + i, T + 4 + i))
        e("v_add_f32 v%d, v%d, v%d" % (T + 8 + i, T + 8 + i, T + 12 + i))
    for i in range(4):
        e("v_add_f32 v%d, v%d, v%d" % (T + i, T + i, T + 8 + i))
    e("s_lshl_b32 s%d, s%d, 13" % (sT0, sJ))
    e("s_add_u32 s%d, s%d, s%d" % (sT0, sT0, sLdsW))
    e("s_add_u32 s%d, s%d, %d" % (sT0, sT0, WS_KV))
    e("v_lshlrev_b32 v%d, 2, v%d" % (T + 17, vLane))
    for i in range(4):
        g.vm("buffer_atomic_add_f32 v%d, v%d, s[%d:%d], s%d offen offset:%d" % (T + i, T + 17, SRD_WS, SRD_WS + 3, sT0, i * 256), "atom")
    def k2():
        g.wait("Q6", must=False); barrier(); g.lazy(4)
    def asig():
        g.wait("atom"); signal1(0)
    H1 = g.save()
    e("s_cmp_lg_u32 s%d, 0" % sHalf)
    e("s_cbranch_scc1 L_attB")
    def a01():
        for n in range(2): p2_issue_A(n)
    w45 = lambda: W_dmas(4, sPark, True) + W_dmas(5, sPark, True)
    fill = {}
    spread(fill, parks((0, 1)), 0, cfg.apark)
    addf(fill, cfg.asp, sample)
    if cfg.aw45 == 2: spread(fill, w45(), cfg.awlo, cfg.awlo + cfg.wspan)
    addf(fill, cfg.apos, asig); addf(fill, min(cfg.apos + 3, 27), lambda: signal2(8, "FH", 2))
    tile(ACC[1], (vTr, vTr2), 128, QR, bnd={12: k2}, fill=fill)
    g.stamp(34)
    try_issue(a01, False, stampi=6)
    mfma_fence()
    epi_phi(ACC[1], PK, fills=w45() if cfg.aw45 == 3 else [], pk=False)
    pq_pads()
    g.stamp(5)
    e("s_cmp_ge_u32 s2, 224"); e("s_cbranch_scc1 L_idleA")
    try_issue(a01, True, stampi=6)
    g.wait(["A0", "W0"])
    consumers([(o_ops(False) + o_ops(True), cfg.oc * 8 + 1, cfg.oc * 8 + 1 + cfg.olen)],
              {cfg.oc: o_reads, cfg.oc + 1: lambda: o_reads(True)}, {1: ["A1", "W1"], 4: ["W4"], 5: ["W5"], cfg.of + 100: ["so"]})
    g.lab("L_attB"); g.load(H1); g.lq = []
    fill = {}
    spread(fill, parks((0, 1)), 0, cfg.apark)
    if cfg.aw45 == 1: spread(fill, w45(), cfg.awlo, cfg.awlo + cfg.wspan)
    addf(fill, cfg.apos, asig); addf(fill, min(cfg.apos + 3, 27), lambda: signal2(8, "FH", 2))
    tile(ACC[1], (vTr, vTr2), 128, QR, bnd={12: k2}, fill=fill)
    g.stamp(34)
    def gout():
        e("v_mul_f32 v%d, s%d, v%d" % (T, sLog2e, ACC[1] + 12))
        e("v_exp_f32_e64 v%d, -v%d" % (T, T))
        e("s_nop 0")
        e("v_add_f32 v%d, 1.0, v%d" % (T, T))
        e("v_rcp_f32 v%d, v%d" % (T, T))
        e("v_lshlrev_b32 v%d, 2, v%d" % (T + 1, vLane))
        e("s_lshl_b32 s%d, s%d, 2" % (sT0, sRB))
        e("s_add_u32 s%d, s%d, s%d" % (sT0, sT0, sTG))
        e("s_lshl_b32 s%d, s%d, 7" % (sT0, sT0))
        e("s_add_u32 s%d, s%d, %d" % (sT0, sT0, WS_G - 128))
        e("s_mov_b32 exec_lo, 0")
        e("buffer_store_dword v%d, v%d, s[%d:%d], s%d offen sc0 sc1" % (T, T + 1, SRD_WS, SRD_WS + 3, sT0))
        e("s_mov_b64 exec, -1")
        e("s_nop 0")
    def bops(pk): return [(4, lambda: cond("s_cmp_lg_u32 s%d, 0" % sJ, gout))] + phi_ops(ACC[1], PK, pk) + [(8, pq_pads)]
    if cfg.kvl == 0: sample(sSlotH, 2, vPoll2, "kvp")
    mfma_fence()
    run_ops(bops(True), [])
    e("s_cmp_ge_u32 s2, 224"); e("s_cbranch_scc1 L_idleB")
    def pqw():
        e("s_lshl_b32 s%d, s%d, 11" % (sT0, sTG))
        e("v_add_u32 v%d, s%d, v%d" % (TMP, sT0, vL16))
        e("ds_write_b128 v%d, %s offset:%d" % (TMP, R(PK), PQX))
        e("ds_write_b128 v%d, %s offset:%d" % (TMP, R(PK + 4), PQX + 1024))
    late = {0: [(4, pqw), (5, lambda: e("s_waitcnt lgkmcnt(0)"))]}
    g.stamp(5)
    g.wait("W0", must=False)
    producers(True, late, 2, [m for m in range(2, 18) if not (cfg.aw45 and m in (4, 5))])
    g.lab("L_idleB")
    e(poll_instr(sSlotH, 2))

    e("s_waitcnt vmcnt(0)")
    poll_check(sSlotH, 2, 0xffff)
    kv_load()
    g.lab("L_idleA")
    e("s_waitcnt vmcnt(0)")
    barrier()
    o_compute()
    e("s_waitcnt vmcnt(0)")
    barrier()
    only_wave(0, lambda: write_flag("FR", 3))
    e("s_branch L_fin")

def producers(att, late, na, todo):
    g.lq = []
    gates = {2: (2, 0xff00), 6: (3, 0xff00), 10: (4, 0xff00), 12: (3, 0xff)}
    samp = {2 - cfg.gs2: 2, 6 - cfg.gs6: 3, 10 - cfg.gs6: 4, 12 - cfg.gs12: 3}
    late = dict(late)
    greg = lambda m: (vPoll2 + 2 if m == 12 else vPoll) if cfg.peek else vPoll
    g.keepH = False
    sD = sPark
    for n in range(18):
        if n:
            tags = ["A%d" % n, "W%d" % n]
            if not att and n == cfg.f3: tags.append("st2")
            if att and n == cfg.oc: tags.append("kvl")
            g.wait(tags, must=False)
            g.stamp(16 + n)
        barrier()
        if n == 0: g.stamp(8)
        if cfg.peek:
            for m in (n + 1, n + 2):
                if m in gates: sample(sSlot, gates[m][0], greg(m), "poll%d" % m)
        elif n in samp and n not in gates: sample(sSlot, samp[n])
        if att and n == cfg.kvl - 1: sample(sSlotH, 2, vPoll2, "kvp")
        if not att and n == cfg.f3: only_wave(4, lambda: write_flag("FR", 3))
        if not att and n == cfg.f4: only_wave(5, lambda: write_flag("FR", 4))
        if att and n == cfg.of: only_wave(4, lambda: write_flag("FR", 3))
        Wd = []
        if todo and todo[0] - 5 <= n:
            m = todo.pop(0)
            assert m > n
            Wd = W_dmas(m, sD)
        Ad = A_dmas(n + 2, sD) if (na <= n + 2 <= 17) else []
        if cfg.xg & 8: Wd = []
        if cfg.xg & 16: Ad = []
        if n in gates and cfg.gord:
            def gate(n=n, Ad=Ad, Wd=Wd, m=m if Wd else None):
                la = g.newlab("L_gl"); lb = g.newlab("L_gj")
                if cfg.peek:
                    for q in g.H: assert q.count("poll%d" % n) <= 1
                else: g.wait("poll", must=False)
                poll_test(gates[n][1], greg(n))
                e("s_cbranch_scc0 %s" % la)
                H = g.save()
                for f in Ad + Wd: f()
                e("s_branch %s" % lb)
                H1 = g.save(); g.load(H)
                g.lab(la)
                sample(sSlot, gates[n][0], greg(n))
                for f in (W_dmas(m, sD) if m is not None else []): f()
                g.wait("poll")
                poll_check(sSlot, gates[n][0], gates[n][1], greg(n))
                for f in A_dmas(n + 2, sD): f()
                g.lab(lb)
                g.H = H1 + g.H
            D = [gate]
            assert cfg.peek or n not in samp
        elif n in gates:
            def chk(n=n):
                g.wait("poll", must=False)
                poll_check(sSlot, gates[n][0], gates[n][1])
                if n in samp: sample(sSlot, samp[n])
            D = Wd + [chk] + Ad
        else: D = Ad + Wd
        if att and n == cfg.kvl:
            def kv():
                g.wait("kvp", must=False)
                poll_check(sSlotH, 2, 0xffff, vPoll2)
                kv_load()
            D = D + [kv]
        if n in late:
            ops = late[n]
            k = len(ops)
            while k > 0 and ops[k - 1][0] == 5: k -= 1
            run_ops(ops[:k], D)
            for c, f in ops[k:]: f()
        else:
            for f in D: f()
        if cfg.glds and n == 12:
            def gl():
                e("s_lshl_b32 s%d, s%d, 8" % (sT0, sTB))
                e("s_add_u32 s%d, s%d, %d" % (sT0, sT0, WS_G))
                e("v_lshlrev_b32 v%d, 2, v%d" % (TMP, vLane))
                e("s_mov_b32 m0, %d" % MISC)
                e("s_nop 0")
                e("buffer_load_dword v%d, s[%d:%d], s%d offen sc1 lds" % (TMP, SRD_WS, SRD_WS + 3, sT0))
            only_wave(7, gl)
        g.stamp(40 + n)
    assert not todo
    g.keepH = True
    g.stamp(9)
    e("s_branch L_fin")

def consumers(jobs, hooks, waits):
    accA, accB = ACC[0], ACC[1]
    items = []; bnd = {}; fill = {}
    for n in range(18):
        def boundary(n=n):
            tags = waits.get(n, []) + waits.get(n + 100, [])
            if tags: g.wait(tags, must=False)
            if n: g.lwait0()
            barrier()
            g.lazy(16 + n if n else 8)
            if n in hooks: hooks[n]()
            if n == 17:
                g.ds("ds_read_b32 v%d, v%d offset:%d" % (vG, vG, MISC), "g")
        bnd[len(items)] = boundary
        for s in range(8):
            k = len(items); w = 8 * (k % 8)
            def rd(k=k, w=w, n=n, s=s):
                if cfg.xl == 1 and s % 2: return
                if cfg.xl == 2 and s % 8: return
                wt = WT(n)
                a, o = (vWlo, wt - 4 * 16384) if wt < 7 * 16384 else (vWhi, wt - 7 * 16384)
                o += (s // 4) * 8192 + (s % 4) * 2048
                g.ds("ds_read_b64_tr_b16 %s, v%d offset:%d" % (R(w, 2, "a"), a, o), k)
                g.ds("ds_read_b64_tr_b16 %s, v%d offset:%d" % (R(w + 2, 2, "a"), a, o + 1024), k)
                g.ds("ds_read_b128 %s, v%d offset:%d" % (R(w + 4, 4, "a"), vAr, AT(n) + (s // 4) * 8192 + (s % 4) * 1024), k)
            def mf(k=k, w=w, n=n, s=s):
                g.lwait(k)
                acc = accB if n < 14 else accA
                mfma(R(acc, 16), R(w, 4, "a"), R(w + 4, 4, "a"), "0" if (n in (0, 14) and s == 0) else R(acc, 16))
            items.append((rd, mf))
    for ops, lo, hi in jobs:
        if cfg.xg & 2: continue
        tot = sum(c for c, _ in ops); acc = 0
        for c, f in ops:
            addf(fill, lo + (acc * (hi - lo)) // tot, f); acc += c
    pipe(items, 4, bnd, fill, cfg.bd2)
    g.stamp(9)
    mfma_fence()
    WF = TMP
    for i in range(16):
        e("v_sub_f32 v%d, v%d, v%d" % (accA + i, accA + i, accB + i))
    for i in range(16):
        e("v_fma_f32 v%d, v%d, v%d, v%d" % (accA + i, accA + i, vG, accB + i))
    for i in range(8):
        e("v_cvt_pk_bf16_f32 v%d, v%d, v%d" % (WF + i, accA + 2 * i, accA + 2 * i + 1))
    e("s_nop 1")
    for qq in range(2):
        e("v_permlane32_swap_b32 v%d, v%d" % (WF + 4 * qq, WF + 4 * qq + 2))
        e("v_permlane32_swap_b32 v%d, v%d" % (WF + 4 * qq + 1, WF + 4 * qq + 3))
    e("s_nop 1")
    for qq in range(2):
        e("buffer_store_dwordx4 %s, v%d, s[%d:%d], s%d offen offset:%d%s" % (R(WF + 4 * qq), vOut, SRD_OUT, SRD_OUT + 3, sOutB, qq * 32, ["", " sc0 sc1", " nt", " sc1"][cfg.outsc]))
    e("s_branch L_fin")

def build():
    T = TMP
    e("s_cmp_ge_u32 s2, 256")
    e("s_cbranch_scc1 L_end")
    e("s_load_dwordx16 s[4:19], s[0:1], 0")
    if not cfg.ksplit:
        e("s_load_dwordx4 s[20:23], s[0:1], 64")
        e("s_load_dwordx2 s[24:25], s[0:1], 80")
    e("s_memrealtime s[%d:%d]" % (sNonce, sNonce + 1))
    if cfg.stamps:
        e("s_memrealtime s[98:99]")
        e("s_memtime s[%d:%d]" % (sMask, sMask + 1))
    e("v_lshrrev_b32 v%d, 6, v0" % T)
    e("v_and_b32 v%d, 63, v0" % vLane)
    e("v_readfirstlane_b32 s%d, v%d" % (sWave, T))
    e("v_mov_b32 v%d, 0" % vZero)
    e("s_lshr_b32 s%d, s2, 3" % sT0)
    e("s_and_b32 s%d, s2, 1" % sT1)
    e("s_lshl_b32 s%d, s%d, 3" % (sT1, sT1))
    e("s_and_b32 s%d, s%d, 7" % (sT2, sT0))
    e("s_add_u32 s%d, s%d, s%d" % (sRB, sT1, sT2))
    e("s_lshr_b32 s%d, s%d, 3" % (sT3, sT0))
    e("s_and_b32 s%d, s2, 6" % sT1)
    e("s_and_b32 s%d, s%d, 1" % (sT4, sT3))
    if cfg.map:
        e("s_lshl_b32 s%d, s%d, 1" % (sRB, sT1))
        e("s_and_b32 s%d, s%d, 3" % (sT4, sT0))
        e("s_add_u32 s%d, s%d, s%d" % (sRB, sRB, sT4))
        e("s_and_b32 s%d, s2, 1" % sT1)
        e("s_lshl_b32 s%d, s%d, 2" % (sT1, sT1))
        e("s_bfe_u32 s%d, s%d, 0x20002" % (sT4, sT0))
    e("s_lshl_b32 s%d, s%d, 1" % (sT5, sT3))
    e("s_add_u32 s%d, s%d, s%d" % (sRot, sT2, sT5))
    e("s_cmp_ge_u32 s%d, 7" % sRot)
    e("s_cselect_b32 s%d, 7, 0" % sT5)
    e("s_sub_u32 s%d, s%d, s%d" % (sRot, sRot, sT5))
    if cfg.rot1 == 0: e("s_mov_b32 s%d, 0" % sRot)
    if cfg.rot1 == 2: e("s_and_b32 s%d, s%d, 1" % (sRot, sT2))
    if cfg.rot1 == 7:
        e("s_and_b32 s%d, s2, 7" % sRot)
        e("s_cmp_eq_u32 s%d, 7" % sRot)
        e("s_cselect_b32 s%d, 3, s%d" % (sRot, sRot))
    if cfg.rot1 == 8:
        e("s_xor_b32 s%d, s%d, s%d" % (sRot, sT2, sT3))
        e("s_and_b32 s%d, s%d, 1" % (sRot, sRot))
        e("s_mul_i32 s%d, s%d, 3" % (sRot, sRot))
        e("s_and_b32 s%d, s2, 7" % sT5)
        e("s_add_u32 s%d, s%d, s%d" % (sRot, sRot, sT5))
        e("s_cmp_ge_u32 s%d, 7" % sRot)
        e("s_cselect_b32 s%d, 7, 0" % sT5)
        e("s_sub_u32 s%d, s%d, s%d" % (sRot, sRot, sT5))
    if cfg.rot1 == 9:
        e("s_lshr_b32 s%d, s%d, 1" % (sRot, sT3))
        e("s_mul_i32 s%d, s%d, 3" % (sRot, sRot))
        e("s_and_b32 s%d, s2, 7" % sT5)
        e("s_add_u32 s%d, s%d, s%d" % (sRot, sRot, sT5))
        e("s_cmp_ge_u32 s%d, 7" % sRot)
        e("s_cselect_b32 s%d, 7, 0" % sT5)
        e("s_sub_u32 s%d, s%d, s%d" % (sRot, sRot, sT5))
    if cfg.rot1 == 3: e("s_mov_b32 s%d, s%d" % (sRot, sT3))
    if cfg.rot1 == 4:
        e("s_xor_b32 s%d, s%d, s%d" % (sRot, sT2, sT3))
        e("s_and_b32 s%d, s%d, 1" % (sRot, sRot))
        e("s_mul_i32 s%d, s%d, 3" % (sRot, sRot))
    if cfg.rot1 == 5:
        e("s_add_u32 s%d, s%d, s%d" % (sRot, sT2, sT3))
        e("s_mul_i32 s%d, s%d, 43" % (sT5, sRot))
        e("s_lshr_b32 s%d, s%d, 7" % (sT5, sT5))
        e("s_mul_i32 s%d, s%d, 3" % (sT5, sT5))
        e("s_sub_u32 s%d, s%d, s%d" % (sRot, sRot, sT5))
        e("s_lshl_b32 s%d, s%d, 1" % (sRot, sRot))
    if cfg.rot1 == 6:
        e("s_add_u32 s%d, s%d, s%d" % (sRot, sT2, sT3))
        e("s_and_b32 s%d, s%d, 3" % (sRot, sRot))
        e("s_lshl_b32 s%d, s%d, 1" % (sRot, sRot))
    e("v_lshrrev_b32 v%d, 3, v%d" % (T, vLane))
    e("v_and_b32 v%d, 7, v%d" % (T + 1, vLane))
    e("v_lshrrev_b32 v%d, 4, v%d" % (T + 2, vLane))
    e("v_lshl_add_u32 v%d, s%d, 4, v%d" % (T + 3, sWave, T))
    e("v_mul_u32_u24 v%d, 896, v%d" % (T + 3, T + 3))
    e("v_xor_b32 v%d, v%d, v%d" % (T + 4, T + 1, T + 2))
    e("v_lshl_add_u32 v%d, v%d, 4, v%d" % (vXd0, T + 4, T + 3))
    e("v_xor_b32 v%d, 4, v%d" % (T + 4, T + 4))
    e("v_lshl_add_u32 v%d, v%d, 4, v%d" % (vXd1, T + 4, T + 3))
    e("v_add_u32 v%d, %d, v%d" % (vXd1, 8 * 896 - 1024, vXd1))
    e("v_and_b32 v%d, 1, v%d" % (T + 5, T + 2))
    e("v_lshlrev_b32 v%d, 2, v%d" % (T + 5, T + 5))
    e("v_xor_b32 v%d, v%d, v%d" % (T + 5, T + 5, T + 1))
    e("s_cmp_ge_u32 s%d, 2" % sT3)
    e("s_cbranch_scc1 L_att")
    e("s_add_u32 s%d, s%d, s%d" % (sJ, sT1, sT4))
    e("s_add_u32 s%d, s%d, 8" % (sRole, sJ))
    first_part(False)
    if cfg.stamps: e("v_writelane_b32 v%d, s%d, 0" % (vSt, sMask))
    if not cfg.ksplit:
        g.stamp(15)
        publish_nonce()
    g.H = [[]]; g.lq = []
    ffn_path()
    g.lab("L_att"); g.H = [[]]; g.lq = []
    if not cfg.map:
        e("s_cmp_eq_u32 s%d, 6" % sT1)
        e("s_cselect_b32 s%d, 1, 0" % sT5)
        e("s_xor_b32 s%d, s%d, s%d" % (sT4, sT4, sT5))
    e("s_add_u32 s%d, s%d, s%d" % (sJ, sT1, sT4))
    e("s_mov_b32 s%d, s%d" % (sRole, sJ))
    first_part(True)
    if cfg.stamps: e("v_writelane_b32 v%d, s%d, 0" % (vSt, sMask))
    att_path()
    g.lab("L_fin")
    if cfg.stamps:
        e("s_waitcnt vmcnt(0)")
        g.stamp(10)
        e("s_lshl_b32 s%d, s2, 3" % sT0)
        e("s_add_u32 s%d, s%d, s%d" % (sT0, sT0, sWave))
        e("s_lshl_b32 s%d, s%d, 8" % (sT0, sT0))
        e("s_add_u32 s%d, s%d, %d" % (sMask, sWS, WS_STAMP))
        e("s_addc_u32 s%d, s%d, 0" % (sMask + 1, sWS + 1))
        e("v_lshl_add_u32 v%d, v%d, 2, s%d" % (TMP, vLane, sT0))
        e("v_writelane_b32 v%d, s98, 12" % vSt)
        e("s_getreg_b32 s%d, hwreg(HW_REG_HW_ID)" % sT3)
        e("v_writelane_b32 v%d, s%d, 14" % (vSt, sT3))
        e("s_getreg_b32 s%d, hwreg(HW_REG_XCC_ID)" % sT3)
        e("v_writelane_b32 v%d, s%d, 13" % (vSt, sT3))
        e("s_memrealtime s[%d:%d]" % (sStamp, sStamp + 1))
        e("s_waitcnt lgkmcnt(0)")
        e("v_writelane_b32 v%d, s%d, 11" % (vSt, sStamp))
        e("global_store_dword v%d, v%d, s[%d:%d]" % (TMP, vSt, sMask, sMask + 1))
        if cfg.dbgwg >= 0:
            e("s_cmp_lg_u32 s2, %d" % cfg.dbgwg); e("s_cbranch_scc1 L_end")
            e("s_cmp_lg_u32 s%d, 0" % sWave); e("s_cbranch_scc1 L_end")
            e("v_lshlrev_b32 v%d, 2, v%d" % (TMP, vLane))
            e("s_mov_b64 exec, 0x1fff")
            e("global_store_dword v%d, v%d, s[%d:%d] offset:8" % (TMP, vSt, sDBG, sDBG + 1))
    g.lab("L_end")
    e("s_endpgm")

def main():
    out = sys.argv[1]
    for a in sys.argv[2:]:
        k, v = a.split("=")
        assert hasattr(cfg, k), k
        setattr(cfg, k, int(v))
    build()
    K = NAME + "_kernel"
    hdr = "; gated mix: linear attention block + mish FFN, single persistent launch (written with my own generator script)\n"
    hdr += "; @launch grid=(256,1,1) block=(512,1,1) lds=%d\n" % LDS_BYTES
    hdr += '.amdgcn_target "amdgcn-amd-amdhsa--gfx950"\n.text\n.globl %s\n.p2align 8\n.type %s,@function\n%s:\n' % (K, K, K)
    ftr = '''.section .rodata,"a"
.p2align 6
.amdhsa_kernel %s
  .amdhsa_next_free_vgpr %d
  .amdhsa_next_free_sgpr 102
  .amdhsa_accum_offset %d
  .amdhsa_group_segment_fixed_size 0
  .amdhsa_kernarg_size 88
  .amdhsa_user_sgpr_count 2
  .amdhsa_user_sgpr_kernarg_segment_ptr 1
  .amdhsa_system_sgpr_workgroup_id_x 1
%s.end_amdhsa_kernel
''' % (K, NVG + NAG, NVG, "  .amdhsa_ieee_mode 0\n" if cfg.m2 else "")
    open(out, "w").write(hdr + "\n".join(g.L) + "\n" + ftr)
main()
```
